```python
import torch

def _softmax(x, axis=-1):
    return torch.softmax(x, dim=axis)
def _gelu(x):
    return torch.nn.functional.gelu(x, approximate="tanh")
def _silu(x):
    return torch.nn.functional.silu(x)
def _sigmoid(x):
    return torch.sigmoid(x)
def _layernorm(x, axis=-1, eps=1e-5):
    m = x.mean(dim=axis, keepdim=True)
    v = x.var(dim=axis, keepdim=True, unbiased=False)
    return (x - m) / torch.sqrt(v + eps)
def _scatter_add(tgt, idx, src, axis=0):
    return tgt.clone().index_add_(axis, idx, src)
def _segment_sum(src, seg, n):
    out = torch.zeros((n,) + src.shape[1:], dtype=src.dtype)
    return out.index_add_(0, seg, src)
def _pad(x, pw):
    flat = tuple(v for pair in reversed(pw) for v in pair)
    return torch.nn.functional.pad(x, flat)

kernel_name = 'recurrent_scan__ssm_conv_s4d__mixer_s_mlp__prompt'

def setup_inputs():

    _w = (lambda a: (lambda t: t.to(torch.bfloat16) if t.is_floating_point() else t)(torch.as_tensor(a)))
    def _A_setup():
        Bsz, L, D, N = 1, 2048, 512, 128
        return {
            "u": _w((lambda *s: torch.randn(*s, dtype=torch.bfloat16) * 0.05)(Bsz, L, D)),
            "log_A_real": _w((lambda *s: torch.randn(*s, dtype=torch.bfloat16) * 6.4)(D, N) * 0.5),
            "A_imag": _w((lambda *s: torch.randn(*s, dtype=torch.bfloat16) * 0.05)(D, N) * 3.14),
            "C_real": _w((lambda *s: torch.randn(*s, dtype=torch.bfloat16) * 0.05)(D, N) / N ** 0.5),
            "C_imag": _w((lambda *s: torch.randn(*s, dtype=torch.bfloat16) * 0.05)(D, N) / N ** 0.5),
            "log_dt": _w((lambda *s: torch.randn(*s, dtype=torch.bfloat16) * 0.05)(D) * 0.5 - 4.0),
            "D_skip": _w((lambda *s: torch.randn(*s, dtype=torch.bfloat16) * 0.05)(D)),
        }
    _A_in = _A_setup()

    def _B_setup():
        B, S, D, F = 1, 2048, 512, 1792
        return {
            "x":  _w((lambda *s: torch.randn(*s, dtype=torch.bfloat16) * 0.05)(B, S, D)),
            "w1": _w((lambda *s: torch.randn(*s, dtype=torch.bfloat16) * 6.4)(D, D) * (D ** -0.5)),
            "w2": _w((lambda *s: torch.randn(*s, dtype=torch.bfloat16) * 6.4)(D, D) * (D ** -0.5)),
            "w3": _w((lambda *s: torch.randn(*s, dtype=torch.bfloat16) * 6.4)(D, F) * (D ** -0.5)),
            "w4": _w((lambda *s: torch.randn(*s, dtype=torch.bfloat16) * 6.4)(F, D) * (F ** -0.5)),
        }
    _B_in = _B_setup()

    return {
        "A_u": _A_in["u"],
        "A_log_A_real": _A_in["log_A_real"],
        "A_A_imag": _A_in["A_imag"],
        "A_C_real": _A_in["C_real"],
        "A_C_imag": _A_in["C_imag"],
        "A_log_dt": _A_in["log_dt"],
        "A_D_skip": _A_in["D_skip"],
        "B_x": _B_in["x"],
        "B_w1": _B_in["w1"],
        "B_w2": _B_in["w2"],
        "B_w3": _B_in["w3"],
        "B_w4": _B_in["w4"],
    }

def reference(A_u, A_log_A_real, A_A_imag, A_C_real, A_C_imag, A_log_dt, A_D_skip, B_x, B_w1, B_w2, B_w3, B_w4):
    def _A_ref(u, log_A_real, A_imag, C_real, C_imag, log_dt, D_skip):
        L = u.shape[1]
        dt = torch.exp(log_dt)
        A = -torch.exp(log_A_real) + 1j * A_imag
        C = (C_real + 1j * C_imag) * dt[:, None]
        pos = (lambda x, dt: x.to(dt))(torch.arange(L), log_dt.dtype)
        P = torch.exp((A * dt[:, None])[:, :, None] * pos[None, None, :])
        K = 2.0 * torch.einsum("dn,dnl->dl", C, P).real
        L2 = 2 * L
        u_t = (lambda x, *d: x.permute(*d))(u, 0, 2, 1)
        Kf = (lambda x, *a, **k: torch.fft.rfft(x.float(), *a, **k))(K, L2)
        Uf = (lambda x, *a, **k: torch.fft.rfft(x.float(), *a, **k))(u_t, L2)
        y = (lambda x, *a, **k: torch.fft.irfft(x, *a, **k).to(torch.bfloat16))(Uf * Kf[None, :, :], L2)[:, :, :L]
        y = (lambda x, *d: x.permute(*d))(y, 0, 2, 1)
        return y + u * D_skip[None, None, :]

    def _B_ref(x, w1, w2, w3, w4):
        B, S, D = x.shape
        h = _gelu(_layernorm(x, axis=-1) @ w1)
        c = D // 4
        g0 = _pad(h[:, :, 0*c:1*c], ((0, 0), (1, 0), (0, 0)))[:, :S, :]
        g1 = _pad(h[:, :, 1*c:2*c], ((0, 0), (0, 1), (0, 0)))[:, 1:, :]
        g2 = _pad(h[:, :, 2*c:3*c], ((0, 0), (2, 0), (0, 0)))[:, :S, :]
        g3 = _pad(h[:, :, 3*c:   ], ((0, 0), (0, 2), (0, 0)))[:, 2:, :]
        hs = torch.concatenate([g0, g1, g2, g3], axis=-1) @ w2
        x1 = x + hs
        h2 = _gelu(_layernorm(x1, axis=-1) @ w3) @ w4
        return x1 + h2

    x = A_u
    xn = _layernorm(x, axis=-1)
    s = _A_ref(xn, A_log_A_real, A_A_imag, A_C_real, A_C_imag, A_log_dt, A_D_skip)
    g = _silu(_B_ref(xn, B_w1, B_w2, B_w3, B_w4))
    return x + s * g
```

```python
import re

REG_RE = re.compile(r'\b([vas])\[(\d+):(\d+)\]|\b([vas])(\d+)\b|\b(vcc|exec|m0|scc)\b')

def regs_of(txt):
    out = []
    for m in REG_RE.finditer(txt):
        if m.group(1):
            out += [(m.group(1), k) for k in range(int(m.group(2)), int(m.group(3)) + 1)]
        elif m.group(4):
            out.append((m.group(4), int(m.group(5))))
        else:
            out.append((m.group(6), 0))
    return out

def split_ops(s):
    out, depth, cur = [], 0, ''
    for ch in s:
        if ch == '[': depth += 1
        if ch == ']': depth -= 1
        if ch == ',' and depth == 0:
            out.append(cur.strip()); cur = ''
        else:
            cur += ch
    if cur.strip(): out.append(cur.strip())
    return out

TRANS = ('v_exp_f32', 'v_log_f32', 'v_rcp_f32', 'v_rsq_f32', 'v_sqrt_f32', 'v_sin_f32', 'v_cos_f32')

class I:
    __slots__ = ('txt', 'op', 'kind', 'defs', 'uses', 'passes', 'A', 'B', 'C', 'mods', 'label')
    def __init__(self, txt):
        self.txt = txt
        self.label = txt.endswith(':')
        t = txt.strip()
        sp = t.split(None, 1)
        self.op = sp[0]
        rest = sp[1] if len(sp) > 1 else ''
        ops = split_ops(rest)
        mods = ''
        if ops:
            last = ops[-1]
            depth = 0
            for k, ch in enumerate(last):
                if ch == '[': depth += 1
                if ch == ']': depth -= 1
                if ch == ' ' and depth == 0:
                    mods = last[k:]; ops[-1] = last[:k]; break
        self.mods = mods
        op = self.op
        self.passes = 0; self.A = self.B = self.C = ()
        R = [regs_of(o) for o in ops]
        flat = lambda L: [r for x in L for r in x]
        defs, uses = [], []
        if self.label:
            self.kind = 'label'
        elif op.startswith('v_mfma'):
            self.kind = 'mfma'
            self.passes = 8 if '32x32' in op else 4
            defs = R[0]; self.A, self.B, self.C = tuple(R[1]), tuple(R[2]), tuple(R[3])
            uses = R[1] + R[2] + R[3]
        elif op.startswith('v_'):
            self.kind = 'valu'
            if op.startswith('v_cmp'):
                defs = R[0]; uses = flat(R[1:])
            elif op.startswith('v_permlane') or op.startswith('v_swap'):
                defs = R[0] + R[1]; uses = R[0] + R[1]
            elif op.startswith(('v_add_co', 'v_sub_co', 'v_addc_co', 'v_subb_co')):
                defs = R[0] + R[1]; uses = flat(R[2:])
            else:
                defs = R[0]; uses = flat(R[1:])
                if op.startswith(('v_fmac', 'v_dot2c', 'v_pk_fmac', 'v_writelane')) or '_dpp' in op or 'UNUSED_PRESERVE' in mods:
                    uses = uses + R[0]
                if op.startswith('v_cndmask') and len(ops) == 3:
                    uses = uses + [('vcc', 0)]
        elif op.startswith('ds_'):
            self.kind = 'ds'
            if op.startswith(('ds_read', 'ds_bpermute', 'ds_permute', 'ds_swizzle')):
                defs = R[0]; uses = flat(R[1:])
                if 'd16' in op: uses = uses + R[0]
            else:
                uses = flat(R)
        elif op.startswith('buffer_') or op.startswith('global_'):
            self.kind = 'vm'
            if op.startswith(('buffer_inv', 'buffer_wbl2')):
                pass
            elif ' lds' in mods + ' ' or '_lds_' in op:
                uses = flat(R) + [('m0', 0)]
            elif '_load' in op:
                defs = R[0]; uses = flat(R[1:])
            else:
                uses = flat(R)
        elif op.startswith(('s_load', 's_memrealtime', 's_memtime', 's_buffer_load')):
            self.kind = 'smem'
            defs = R[0]; uses = flat(R[1:])
        elif op.startswith('s_'):
            self.kind = 'salu'
            if op.startswith(('s_cmp', 's_bitcmp')):
                uses = flat(R); defs = [('scc', 0)]
            elif op.startswith(('s_waitcnt', 's_nop', 's_barrier', 's_branch', 's_cbranch', 's_endpgm', 's_sleep', 's_setprio')):
                pass
            else:
                defs = R[0] if R else []; uses = flat(R[1:])
                if 'saveexec' in op: defs = defs + [('exec', 0)]
        else:
            self.kind = 'other'
        if ('vcc', 0) in defs: pass
        self.defs, self.uses = defs, uses

def states(x):
    if x.label: return 0
    if x.op == 's_nop': return int(x.txt.split()[1]) + 1
    return 1

def need_gap(p, c):
    n = 0
    pd = set(p.defs)
    if p.kind == 'mfma':
        big = p.passes == 8
        if c.kind == 'mfma':
            if pd & (set(c.A) | set(c.B)): n = max(n, 12 if big else 8)
            if pd & set(c.C):
                if not (tuple(p.defs) == tuple(c.C) and p.passes == c.passes): n = max(n, 10 if big else 6)
            if pd & set(c.defs) and not (tuple(p.defs) == tuple(c.C) and p.passes == c.passes):
                n = max(n, 10 if big else 6)
        elif c.kind in ('valu', 'ds', 'vm'):
            if pd & (set(c.uses) | set(c.defs)): n = max(n, 12 if big else 8)
        if c.kind == 'valu' and set(p.C) & set(c.defs): n = max(n, 7 if big else 3)
    elif p.kind == 'valu':
        vd = {r for r in pd if r[0] in 'va'}
        sd = {r for r in pd if r[0] in ('s', 'vcc')}
        if c.kind == 'mfma' and vd & set(c.uses): n = max(n, 2)
        if c.kind == 'valu':
            cu = set(c.uses)
            if sd & cu: n = max(n, 4 if c.op.startswith(('v_readlane', 'v_writelane')) else 2)
            if vd & cu:
                if '_dpp' in c.op: n = max(n, 2)
                if c.op.startswith(('v_readfirstlane', 'v_readlane')): n = max(n, 1)
                if c.op.startswith('v_permlane'): n = max(n, 2)
                if p.op.startswith(TRANS) and not c.op.startswith(TRANS): n = max(n, 1)
            if vd & (cu | set(c.defs)):
                if 'dst_sel:WORD' in p.mods or 'dst_sel:BYTE' in p.mods: n = max(n, 1)
        if p.op.startswith('v_dot2') and vd & (set(c.uses) | set(c.defs)) and c.kind in ('valu', 'mfma', 'ds', 'vm'):
            same = c.op == p.op
            if not same: n = max(n, 3)
            else:
                srcab = set(c.uses) - set(c.defs)
                if vd & srcab: n = max(n, 3)
        if c.kind == 'vm' and sd & set(c.uses): n = max(n, 5)
        if c.kind == 'salu' and sd & set(c.uses): n = max(n, 1)
        if c.op.startswith('s_cbranch_vcc') and ('vcc', 0) in pd: n = max(n, 5)
    elif p.kind == 'salu':
        if ('m0', 0) in pd and c.kind == 'vm' and ('m0', 0) in c.uses: n = max(n, 1)
        if ('exec', 0) in pd and c.kind == 'valu' and '_dpp' in c.op: n = max(n, 1)
    elif p.kind == 'vm':
        if ('store' in p.op) and ('x4' in p.op or 'x3' in p.op):
            data = set(p.uses[:4]) if p.op.startswith('buffer') else set(p.uses)
            if data & set(c.defs): n = max(n, 2 if c.kind == 'valu' else 1)
    return n

class Asm:
    def __init__(self):
        self.ins = []
        self.vmq = []
        self.lgq = []
        self.smem = False
        self.tok = 0
        self.uid = 0
        self.nbytes_marks = []
    def label_name(self, base):
        self.uid += 1
        return f'{base}_{self.uid}'
    def raw(self, txt):
        self.ins.append(I(txt))
    def _wait(self, vm=None, lg=None):
        parts = []
        if vm is not None:
            vm = min(vm, 63)
            if vm < len(self.vmq):
                parts.append(f'vmcnt({vm})'); self.vmq = self.vmq[len(self.vmq) - vm:] if vm else []
        if lg is not None:
            if self.smem: lg = 0
            lg = min(lg, 15)
            if lg < len(self.lgq) or (self.smem and lg == 0):
                parts.append(f'lgkmcnt({lg})'); self.lgq = self.lgq[len(self.lgq) - lg:] if lg else []
                if lg == 0: self.smem = False
        if parts: self.raw('s_waitcnt ' + ' '.join(parts))
    def e(self, txt):
        x = I(txt)
        touched = set(x.defs) | set(x.uses)
        vm = lg = None
        for k, (t, d) in enumerate(self.vmq):
            if d & touched: vm = len(self.vmq) - 1 - k
        for k, (t, d) in enumerate(self.lgq):
            if d & touched: lg = len(self.lgq) - 1 - k
        if self.smem and touched & self.smem_regs: lg = 0
        self._wait(vm, lg)
        self.ins.append(x)
        self.tok += 1
        if x.kind == 'vm':
            self.vmq.append((self.tok, set(x.defs)))
        elif x.kind == 'ds':
            self.lgq.append((self.tok, set(x.defs)))
        elif x.kind == 'smem':
            if not self.smem: self.smem_regs = set()
            self.smem = True; self.smem_regs |= set(x.defs)
        return self.tok
    def __call__(self, txt):
        r = None
        for l in txt.strip().split('\n'):
            l = l.split(';')[0].strip()
            if l: r = self.e(l)
        return r
    def wait_vm(self, tok):
        for k, (t, d) in enumerate(self.vmq):
            if t == tok: self._wait(vm=len(self.vmq) - 1 - k); return
    def wait_lg(self, tok):
        for k, (t, d) in enumerate(self.lgq):
            if t == tok: self._wait(lg=len(self.lgq) - 1 - k); return
    def wait_all(self, vm=True, lg=True):
        self._wait(0 if vm else None, 0 if lg else None)
    def barrier(self):
        self._wait(lg=0)
        self.raw('s_barrier')
    def label(self, name):
        self.raw(name + ':')
    def comment(self, c):
        x = I('s_nop 0'); x.txt = '; ' + c; x.kind = 'comment'; x.label = True; x.op = ';'
        self.ins.append(x)
    def snapshot(self): return (list(self.vmq), list(self.lgq), self.smem)
    def restore(self, s): self.vmq, self.lgq, self.smem = list(s[0]), list(s[1]), s[2]
    def text(self):
        out = []
        for x in self.ins:
            if not x.label:
                need = 0; dist = 0
                for p in reversed(out):
                    if dist >= 20: break
                    if not p.label:
                        g = need_gap(p, x)
                        need = max(need, g - dist)
                    dist += states(p)
                while need > 0:
                    k = min(need, 16)
                    out.append(I(f's_nop {k - 1}')); need -= k
            out.append(x)
        return '\n'.join(('' if x.label else '  ') + x.txt for x in out)

class Regs:
    def __init__(self, kind, n, first=0):
        self.kind, self.n = kind, n
        self.free = [True] * n
        for k in range(first): self.free[k] = False
        self.named = {}
        self.top = set()
        self.hi = first
    def alloc(self, name, cnt=1, align=None):
        if align is None: align = 1 if cnt == 1 else (2 if cnt < 4 else 4)
        rng = range(0, self.n - cnt + 1, align)
        if name in self.top: rng = reversed(rng)
        for s in rng:
            if all(self.free[s:s + cnt]):
                for k in range(s, s + cnt): self.free[k] = False
                self.named[name] = (s, cnt); self.hi = max(self.hi, s + cnt)
                return R(self.kind, s, cnt)
        raise RuntimeError(f'out of {self.kind} regs for {name} x{cnt}; live: {self.named}')
    def release(self, *rs):
        for r in rs:
            for k in range(r.s, r.s + r.n):
                assert not self.free[k], (r, k)
                self.free[k] = True
            for nm, (s, c) in list(self.named.items()):
                if s == r.s and c == r.n: del self.named[nm]

class R:
    def __init__(self, kind, s, n): self.kind, self.s, self.n = kind, s, n
    def __getitem__(self, k):
        if isinstance(k, slice):
            a = k.start or 0; b = self.n if k.stop is None else k.stop
            assert 0 <= a < b <= self.n, (a, b, self.n)
            return R(self.kind, self.s + a, b - a)
        assert 0 <= k < self.n, (k, self.n)
        return R(self.kind, self.s + k, 1)
    def __str__(self):
        return f'{self.kind}{self.s}' if self.n == 1 else f'{self.kind}[{self.s}:{self.s + self.n - 1}]'
    __repr__ = __str__
    def __format__(self, spec): return str(self)
```

```python
from gen import *
from asmlib import R

def AG(s, n): return R('a', s, n)

class Stream:
    def __init__(self, k, srd, voff, nsteps, depth, lbase, wstride, rowbytes, soff_init, areg):
        a, v, s = k.a, k.v, k.s
        self.k, self.srd, self.voff, self.n, self.depth, self.rb, self.areg = k, srd, voff, nsteps, depth, rowbytes, areg
        self.sM = s.alloc('stM'); self.sO = s.alloc('stO'); self.vA = v.alloc('stA', 2)
        a(f's_mul_i32 {self.sM}, {k.sW}, {wstride}\ns_add_u32 {self.sM}, {self.sM}, {lbase}')
        soff_init(self.sO)
        self.ftok = {}; self.ctok = {}; self.nf = 0; self.nc = 0
    def addr(self, flip=None):
        k = self.k; a = k.a
        a(f'v_add_u32 {self.vA[0]}, {self.sM}, {k.vTr}')
        if flip is not None: a(f'v_xor_b32 {self.vA[0]}, {flip}, {self.vA[0]}')
        a(f'v_xor_b32 {self.vA[1]}, 64, {self.vA[0]}')
    def fill(self):
        a = self.k.a; q = self.nf
        if q >= self.n or q - self.depth >= self.nc: return
        if q >= self.depth: a.wait_lg(self.ctok[q - self.depth])
        a(f's_add_u32 m0, {self.sM}, {(q % self.depth) * 2048}')
        if q: a(f's_add_u32 {self.sO}, {self.sO}, {16 * self.rb}')
        else: a('s_nop 0')
        a(f'buffer_load_dwordx4 {self.voff[0]}, {self.srd}, {self.sO} offen lds')
        self.ftok[q] = a(f'buffer_load_dwordx4 {self.voff[1]}, {self.srd}, {self.sO} offen offset:1024 lds')
        self.nf += 1
    def consume(self):
        a = self.k.a; q = self.nc
        if q >= self.n or q >= self.nf: return
        a.wait_vm(self.ftok[q])
        o = (q % self.depth) * 2048
        for ph in range(2):
            d = self.areg(q, ph)
            a(f'ds_read_b64_tr_b16 {d[0:2]}, {self.vA[ph]} offset:{o}')
            self.ctok[q] = a(f'ds_read_b64_tr_b16 {d[2:4]}, {self.vA[ph]} offset:{o + 1024}')
        self.nc += 1
    def free(self):
        self.k.s.release(self.sM, self.sO); self.k.v.release(self.vA)

def cs3_step(k):
    q = k.ncs3
    if q >= k.w3.nc: return
    for ph in range(2):
        d = k.cs3a[4 * ph:4 * ph + 4]
        k.a(f'v_mfma_f32_16x16x32_bf16 {d}, {AG(128 * ph + 4 * q, 4)}, {k.B16}, {d if q else 0}')
    k.ncs3 += 1

def edge1(k):
    a, v, s = k.a, k.v, k.s
    vL, sT, sA, sB, sW, sJ, sI = k.vL, k.sT, k.sA, k.sB, k.sW, k.sJ, k.sI
    t = v.alloc('t', 8)
    KP = k.KP
    a(f'''s_mul_i32 {sT[0]}, {sW}, {KG_W}
          v_lshl_add_u32 {t[0]}, {vL}, 2, {sT[0]}
          v_and_b32 {t[1]}, 15, {vL}
          v_lshrrev_b32 {t[2]}, 4, {vL}
          v_mul_u32_u24 {t[3]}, {KG_R}, {t[1]}
          v_lshl_add_u32 {t[3]}, {t[2]}, 4, {t[3]}
          v_add_u32 {t[3]}, {sT[0]}, {t[3]}''')
    for r in range(57): a(f'ds_write_b32 {t[0]}, {KP[r]} offset:{r * KG_R}')
    v.release(KP)
    if FINE: k.T()
    Ef = v.alloc('Ef', 16); Gf = v.alloc('Gf', 48); D = v.alloc('D', 12)
    for kk in range(4):
        a(f'ds_read_b128 {Ef[4*kk:4*kk+4]}, {t[3]} offset:{41 * KG_R + 64 * kk}')
        for tau in range(3):
            a(f'ds_read_b128 {Gf[12*kk+4*tau:12*kk+4*tau+4]}, {t[3]} offset:{16 * tau * KG_R + 64 * kk}')
    a(f'''s_mul_i32 {sT[1]}, {sB}, {KTS}
          s_add_u32 {sT[1]}, {sT[1]}, {L_KT}
          v_lshrrev_b32 {t[4]}, 1, {t[2]}
          v_lshlrev_b32 {t[4]}, 9, {t[4]}
          v_and_b32 {t[5]}, 1, {t[2]}
          v_lshl_add_u32 {t[4]}, {t[5]}, 4, {t[4]}
          v_lshl_add_u32 {t[4]}, {t[1]}, 5, {t[4]}
          v_add_u32 {t[4]}, {sT[1]}, {t[4]}
          v_lshl_add_u32 {t[0]}, {t[2]}, 8, {sT[1]}
          v_lshl_add_u32 {t[7]}, {t[1]}, 2, {t[0]}
          v_cmp_gt_u32 vcc, 32, {vL}
          v_lshlrev_b32 {t[5]}, 4, {t[1]}
          v_lshlrev_b32 {t[6]}, 3, {t[1]}
          v_cndmask_b32 {t[5]}, {t[6]}, {t[5]}, vcc
          v_add_u32 {t[5]}, {t[5]}, {t[0]}
          v_mov_b32 {t[6]}, 0x80
          v_cndmask_b32 {t[6]}, {t[6]}, 8, vcc
          v_add_u32 {t[6]}, {t[6]}, {t[5]}''')
    for kk in range(4):
        for tau in range(3):
            d = D[4*tau:4*tau+4]
            a(f'v_mfma_f32_16x16x32_f16 {d}, {Gf[12*kk+4*tau:12*kk+4*tau+4]}, {Ef[4*kk:4*kk+4]}, {d if kk else 0}')
    v.release(Ef, Gf)
    if FINE: k.T()
    k.W2F = W2F = v.alloc('W2F', 128)
    a(f's_lshl_b32 {sT[0]}, {sA}, 6\nv_xor_b32 {t[0]}, {sT[0]}, {k.vTr}\nv_add_u32 {t[0]}, {L_W}, {t[0]}')
    def w2rd(ks):
        a(f'ds_read_b64_tr_b16 {W2F[4*ks:4*ks+2]}, {t[0]} offset:{ks*2048}')
        a(f'ds_read_b64_tr_b16 {W2F[4*ks+2:4*ks+4]}, {t[0]} offset:{ks*2048+1024}')
    for ks in range(8): w2rd(ks)
    for q in range(12): a(f'v_mul_f32 {D[q]}, {k.sKinv}, {D[q]}')
    for r in range(4): a(f'ds_add_f32 {t[4]}, {D[r]} offset:{4*r}')
    a(f'ds_add_f32 {t[5]}, {D[4]} offset:1024\nds_add_f32 {t[5]}, {D[5]} offset:1028\nds_add_f32 {t[6]}, {D[6]} offset:1024\nds_add_f32 {t[6]}, {D[7]} offset:1028')
    for r in range(4): a(f'ds_add_f32 {t[7]}, {D[8+r]} offset:{2048+64*r}')
    if FINE: k.T()
    for ks in range(8, 32): w2rd(ks)
    v.release(D); s.release(k.sKinv)
    def so3(sO):
        a(f's_mul_i32 {sO}, {sJ}, 448\ns_lshl_b32 {sT[0]}, {sW}, 7\ns_add_u32 {sO}, {sO}, {sT[0]}')
    k.w3 = Stream(k, k.sW3, k.vW3, 32, 6, L_STG, 12288, 3584, so3, lambda q, ph: AG(128 * ph + 4 * q, 4))
    k.w3.addr()
    k.cs3a = v.alloc('cs3a', 8); k.ncs3 = 0
    a(f's_lshl_b32 {sT[0]}, {sI}, 3\ns_add_u32 {sT[0]}, {sT[0]}, {k.sFc}')
    if FINE: k.T(); k.T()
    a.wait_vm(k.xttok)
    if FINE: k.T()
    a.barrier()
    k.flag_store(sT[0])
    k.T()
    for q in range(3): k.w3.fill()
    V = v.alloc('V', 11, 1); P = v.alloc('P', 8)
    a(f'v_lshlrev_b32 {t[0]}, 4, v0\nv_add_u32 {t[0]}, {L_CP}, {t[0]}')
    for ch in range(2):
        for q in range(11): a(f'ds_read_b32 {V[q]}, {k.GA[q]} offset:{ch * KTS}')
        k.w3.fill()
        for mu in range(4):
            p = P[4*(mu&1):4*(mu&1)+4]
            for q in range(4): a(f'v_cvt_pk_bf16_f32 {p[q]}, {V[3-mu+2*q]}, {V[4-mu+2*q]}')
            a(f'ds_write_b128 {t[0]}, {p} offset:{ch*4*CS + mu*CS}')
    k.w3.fill()
    a(f'''v_lshrrev_b32 {t[1]}, 1, {vL}
          v_mul_u32_u24 {t[1]}, {CS}, {t[1]}
          v_and_b32 {t[2]}, 1, {vL}
          v_lshl_add_u32 {t[1]}, {t[2]}, 4, {t[1]}
          v_add_u32 {t[1]}, {L_CP + 4096}, {t[1]}
          v_mov_b32 {t[4]}, 0
          v_mov_b32 {t[5]}, 0
          v_mov_b32 {t[6]}, 0
          v_mov_b32 {t[7]}, 0
          s_mov_b64 exec, 0xffff
          ds_write_b128 {t[1]}, {t[4:8]}
          s_mov_b64 exec, -1''')
    v.release(V, P, k.GA)
    k.zero4 = t[4:8]; k.e1t = t
    k.vP8 = v.alloc('vP8'); k.vP32 = v.alloc('vP32')
    a(f'v_min_u32 {k.vP8}, 7, {vL}\nv_lshlrev_b32 {k.vP8}, 3, {k.vP8}\nv_and_b32 {k.vP32}, 31, {vL}\nv_lshlrev_b32 {k.vP32}, 3, {k.vP32}')

def p2(k):
    a, v, s = k.a, k.v, k.s
    vL, sT, sA, sB, sW, sJ, sI = k.vL, k.sT, k.sA, k.sB, k.sW, k.sJ, k.sI
    t = k.e1t
    k.T()
    p = k.poll_issue(k.vP8, k.sFr)
    a(f'''s_lshl_b32 {sT[1]}, {sB}, 15
          s_lshl_b32 {sT[2]}, {sA}, 12
          s_add_u32 {sT[1]}, {sT[1]}, {sT[2]}
          s_lshl_b32 {sT[2]}, {sI}, 16
          s_add_u32 {sT[2]}, {sT[2]}, {sT[1]}
          s_lshl_b32 {sT[3]}, {sB}, 15
          v_add_u32 {t[0]}, {sT[3]}, {k.vL16}''')
    k.poll_check(p)
    k.T()
    toks = []
    for c in range(4):
        a(f's_add_u32 m0, {sT[1]}, {c * 8192}\ns_add_u32 {sT[3]}, {sT[2]}, {WS_H + c * 8192}')
        for e in range(4): tk = a(f'buffer_load_dwordx4 {k.vL16}, {k.sWS}, {sT[3]} offen offset:{1024*e} lds')
        toks.append(tk)
        k.w3.consume()
    pc = k.poll_issue(k.vP32, k.sFc)
    k.w3.consume(); k.w3.consume()
    for q in range(6): cs3_step(k)
    NB = 4
    Bf = v.alloc('Bf', 4 * NB)
    X = k.XN
    def rd(ks): a(f'ds_read_b128 {Bf[4*(ks%NB):4*(ks%NB)+4]}, {t[0]} offset:{ks*1024}')
    for c in range(4):
        a.wait_vm(toks[c]); a.barrier()
        if c == 0: k.T()
        for ks in range(8*c, 8*c + NB - 1): rd(ks)
        for ks in range(8*c, 8*c + 8):
            if ks + NB - 1 < 8*c + 8: rd(ks + NB - 1)
            a(f'v_mfma_f32_32x32x16_bf16 {X}, {k.W2F[4*ks:4*ks+4]}, {Bf[4*(ks%NB):4*(ks%NB)+4]}, {X}')
            if c == 0 and ks == 3:
                a(f'''v_lshlrev_b32 {t[1]}, 4, {vL}
                      v_add_u32 {t[1]}, {L_UC}, {t[1]}
                      s_mov_b32 exec_hi, 0x3fffffff
                      ds_write_b128 {t[1]}, {k.zero4}
                      ds_write_b128 {t[1]}, {k.zero4} offset:{UCS}
                      s_mov_b32 exec_hi, -1''')
            if ks & 3 == 3 and ks >= 7: k.w3.fill()
    v.release(k.W2F, Bf)
    k.T()
    k.poll_check(pc)
    a(f'''s_sub_u32 {sT[0]}, {k.sD}, {sB}
          s_add_u32 {sT[0]}, {sT[0]}, {sB}
          s_mul_i32 {sT[0]}, {sT[0]}, {XTS}
          s_lshl_b32 {sT[1]}, {sA}, 11
          s_add_u32 {sT[0]}, {sT[0]}, {sT[1]}
          s_add_u32 {sT[0]}, {sT[0]}, {WS_XT}
          s_mul_i32 {sT[2]}, {sB}, {UCS}
          s_add_u32 {sT[1]}, {sT[1]}, {sT[2]}
          s_add_u32 m0, {sT[1]}, {L_UC + UCP}''')
    xp = v.alloc('xp', 8); SQ = v.alloc('SQ', 2)
    for q in range(8): a(f'v_cvt_pk_bf16_f32 {xp[q]}, {X[2*q]}, {X[2*q+1]}')
    a(f's_add_u32 {sT[3]}, {k.sHo}, {WS_X1}')
    a(f'buffer_load_dwordx4 {k.vL16}, {k.sWS}, {sT[0]} offen lds')
    a(f'buffer_load_dwordx4 {k.vL16}, {k.sWS}, {sT[0]} offen offset:1024 lds')
    a(f'buffer_store_dwordx4 {xp[0:4]}, {k.vL16}, {k.sWS}, {sT[3]} offen sc1')
    a(f'buffer_store_dwordx4 {xp[4:8]}, {k.vL16}, {k.sWS}, {sT[3]} offen offset:1024 sc1')
    a(f'v_mov_b32 {SQ[0]}, 0\nv_mov_b32 {SQ[1]}, 0')
    for q in range(8):
        a(f'v_dot2c_f32_bf16 {SQ[0]}, {k.sOnes}, {xp[q]}\nv_dot2c_f32_bf16 {SQ[1]}, {xp[q]}, {xp[q]}')
    a(f'''v_lshlrev_b32 {t[1]}, 3, {k.vTt}
          v_lshl_add_u32 {t[1]}, {k.vH}, 8, {t[1]}
          s_lshl_b32 {sT[0]}, {sI}, 13
          s_lshl_b32 {sT[1]}, {sJ}, 10
          s_add_u32 {sT[0]}, {sT[0]}, {sT[1]}
          s_lshl_b32 {sT[1]}, {sA}, 9
          s_add_u32 {sT[0]}, {sT[0]}, {sT[1]}
          s_lshl_b32 {sT[1]}, {sB}, 2
          s_add_u32 {sT[0]}, {sT[0]}, {sT[1]}
          s_add_u32 {sT[0]}, {sT[0]}, {WS_STAT}
          v_permlane32_swap_b32 {SQ[0]}, {SQ[1]}
          v_add_f32 {SQ[0]}, {SQ[0]}, {SQ[1]}''')
    tk = a(f'buffer_store_dword {SQ[0]}, {t[1]}, {k.sWS}, {sT[0]} offen sc1')
    a(f's_lshl_b32 {sT[0]}, {sJ}, 3\ns_add_u32 {sT[0]}, {sT[0]}, {k.sFr}\ns_add_u32 {sT[0]}, {sT[0]}, {F2}')
    while k.w3.nc < k.w3.nf: k.w3.consume()
    while k.ncs3 < k.w3.nc: cs3_step(k)
    a.wait_vm(tk)
    a.barrier()
    k.flag_store(sT[0])
    k.T()
    v.release(xp, SQ)

def edge2(k):
    a, v, s = k.a, k.v, k.s
    vL, sT, sA, sB, sW, sJ, sI = k.vL, k.sT, k.sA, k.sB, k.sW, k.sJ, k.sI
    t = k.e1t
    vA = v.alloc('cA'); vB = v.alloc('cB')
    a(f'''v_and_b32 {t[0]}, 3, {vL}
          v_mul_u32_u24 {t[0]}, {CS}, {t[0]}
          v_bfe_u32 {t[1]}, {vL}, 2, 2
          v_lshlrev_b32 {t[1]}, 3, {t[1]}
          v_sub_u32 {t[0]}, {t[0]}, {t[1]}
          v_lshrrev_b32 {t[2]}, 4, {vL}
          v_lshl_add_u32 {t[0]}, {t[2]}, 4, {t[0]}
          s_mul_i32 {sT[0]}, {sB}, {4 * CS}
          s_add_u32 {sT[0]}, {sT[0]}, {L_CP + 24}
          v_add_u32 {vA}, {sT[0]}, {t[0]}
          v_and_b32 {t[1]}, 15, {vL}
          v_lshlrev_b32 {t[3]}, 5, {t[1]}
          v_lshl_add_u32 {t[0]}, {t[2]}, 4, {t[3]}
          s_mul_i32 {sT[0]}, {sB}, {UCS}
          s_lshl_b32 {sT[1]}, {sA}, 9
          s_sub_u32 {sT[0]}, {sT[0]}, {sT[1]}
          s_add_u32 {sT[0]}, {sT[0]}, {L_UC + UCP - 480}
          v_add_u32 {vB}, {sT[0]}, {t[0]}
          v_lshl_add_u32 {t[3]}, {t[2]}, 3, {t[3]}''')
    Y = v.alloc('Y', 16); Af = v.alloc('cAf', 64); Bf = v.alloc('cBf', 64)
    def loads(rho):
        bu = rho & 1; r = 32 * rho; L = []
        for i in range(8):
            d = Bf[32*bu+4*i:32*bu+4*i+4]
            L.append(f'ds_read_b128 {d}, {vB} offset:{2 * (256 * i + 224 - r)}')
            d = Af[32*bu+4*i:32*bu+4*i+4]; o = 2 * (2016 - 256 * i - r)
            L.append(f'ds_read_b64 {d[0:2]}, {vA} offset:{o}')
            L.append(f'ds_read_b64 {d[2:4]}, {vA} offset:{o + 8}')
        return L
    for x in loads(0): a(x)
    first = set()
    for rho in range(8):
        bu = rho & 1
        nxt = loads(rho + 1) if rho < 7 else []
        mm = sorted([(i, nt) for nt in (1, 3, 5, 7) for i in range(nt + 1)], key=lambda x: (max(x[0], x[1] - x[0]), x[1]))
        for n_, (i, nt) in enumerate(mm):
            y = Y[4*(nt>>1):4*(nt>>1)+4]; de = nt - i
            a(f'v_mfma_f32_16x16x32_bf16 {y}, {Af[32*bu+4*i:32*bu+4*i+4]}, {Bf[32*bu+4*de:32*bu+4*de+4]}, {y if nt in first else 0}')
            first.add(nt)
            if n_ >= 2:
                for _ in range(2):
                    if nxt: a(nxt.pop(0))
            if n_ in (4, 14): k.w3.fill()
            if n_ in (9, 19) and rho >= 1: k.w3.consume()
        assert not nxt
    v.release(Af, Bf)
    k.T()
    xu = v.alloc('xu', 8); w = v.alloc('w', 16)
    a(f'''s_mul_i32 {sT[0]}, {sB}, {UCS}
          s_lshl_b32 {sT[1]}, {sA}, 9
          s_sub_u32 {sT[0]}, {sT[0]}, {sT[1]}
          s_add_u32 {sT[0]}, {sT[0]}, {L_UC + UCP}
          v_add_u32 {t[0]}, {sT[0]}, {t[3]}''')
    for q in range(4): a(f'ds_read_b64 {xu[2*q:2*q+2]}, {t[0]} offset:{512 * (2*q+1)}')
    a(f'''s_mul_i32 {sT[0]}, {k.sD}, {XTS}
          s_sub_u32 {sT[0]}, {sT[0]}, {sT[1]}
          s_add_u32 {sT[0]}, {sT[0]}, {WS_ST}''')
    for q in range(8): a(f'v_lshlrev_b32 {w[2*q]}, 16, {xu[q]}\nv_and_b32 {w[2*q+1]}, 0xffff0000, {xu[q]}')
    for q in range(8): a(f'v_pk_fma_f32 {Y[2*q:2*q+2]}, {w[2*q:2*q+2]}, {k.vPar[4:6]}, {Y[2*q:2*q+2]} op_sel:[0,1,0] op_sel_hi:[1,1,1]')
    for q in range(8): a(f'v_cvt_pk_bf16_f32 {xu[q]}, {Y[2*q]}, {Y[2*q+1]}')
    for q in range(4): k.sttok = a(f'buffer_store_dwordx2 {xu[2*q:2*q+2]}, {t[3]}, {k.sWS}, {sT[0]} offen offset:{512 * (2*q+1)} sc1')
    v.release(Y, xu, w, vA, vB, k.vPar)
    while k.w3.nc < 32:
        k.w3.fill(); k.w3.consume(); cs3_step(k); cs3_step(k)
    while k.ncs3 < 32: cs3_step(k)
    k.w3.free(); v.release(k.vW3)
    k.CS3 = v.alloc('CS3', 32)
    a(f'''s_mov_b32 exec_lo, 0x01010101
          s_mov_b32 exec_hi, 0x01010101
          ds_write_b128 {k.vCW}, {k.cs3a[0:4]}
          ds_write_b128 {k.vCW}, {k.cs3a[4:8]} offset:128
          s_mov_b64 exec, -1''')
    for q in range(8): a(f'ds_read_b128 {k.CS3[4*q:4*q+4]}, {k.vCR} offset:{32*q}')
    v.release(k.cs3a, k.vCW, k.vCR, k.B16)
    k.T()

def p3(k):
    a, v, s = k.a, k.v, k.s
    vL, sT, sA, sB, sW, sJ, sI = k.vL, k.sT, k.sA, k.sB, k.sW, k.sJ, k.sI
    t = k.e1t
    a(f's_add_u32 {sT[4]}, {k.sFr}, {F2}')
    p = k.poll_issue(k.vP8, sT[4])
    def so4(sO):
        a(f's_mul_i32 {sO}, {sW}, {448 * 1024}\ns_lshl_b32 {sT[0]}, {sJ}, 7\ns_add_u32 {sO}, {sO}, {sT[0]}')
    k.w4 = w4 = Stream(k, k.sW4, k.vWd, 28, 10, L_W4, 20480, 1024, so4, lambda q, ph: AG(8 * q + 4 * ph, 4))
    a(f's_lshl_b32 {sT[0]}, {sA}, 6')
    w4.addr(flip=sT[0])
    a(f'''s_lshl_b32 {sT[1]}, {sW}, 12
          s_lshl_b32 {sT[2]}, {sI}, 16
          s_add_u32 {sT[2]}, {sT[2]}, {sT[1]}
          s_lshl_b32 {sT[5]}, {sI}, 3
          s_add_u32 {sT[5]}, {sT[5]}, {k.sFc}
          s_add_u32 {sT[5]}, {sT[5]}, {FC - F1C}''')
    a.wait_vm(k.sttok)
    a.barrier()
    k.flag_store(sT[5])
    k.poll_check(p)
    k.T()
    toks = []
    for c in range(4):
        a(f's_add_u32 m0, {sT[1]}, {c * 16384}\ns_add_u32 {sT[3]}, {sT[2]}, {WS_X1 + c * 16384}')
        for e in range(4): tk = a(f'buffer_load_dwordx4 {k.vL16}, {k.sWS}, {sT[3]} offen offset:{1024*e} lds')
        if c == 1:
            a(f'''s_lshl_b32 {sT[0]}, {sW}, 11
                  s_add_u32 m0, {sT[0]}, {L_ST2}
                  s_lshl_b32 {sT[3]}, {sI}, 13
                  s_add_u32 {sT[3]}, {sT[3]}, {sT[0]}
                  s_add_u32 {sT[3]}, {sT[3]}, {WS_STAT}''')
            a(f'buffer_load_dwordx4 {k.vL16}, {k.sWS}, {sT[3]} offen lds')
            tk = a(f'buffer_load_dwordx4 {k.vL16}, {k.sWS}, {sT[3]} offen offset:1024 lds')
        toks.append(tk)
    sH3 = s.alloc('h3o'); vS1 = v.alloc('vS1')
    a(f'''s_mul_i32 {sH3}, {sI}, 229376
          s_mul_i32 {sT[0]}, {sJ}, 14336
          s_add_u32 {sH3}, {sH3}, {sT[0]}
          s_add_u32 {sH3}, {sH3}, {sT[1]}
          s_add_u32 {sH3}, {sH3}, {WS_H3}
          s_cmp_eq_u32 {sW}, 3
          s_cselect_b32 {sT[0]}, {hex(OOB)}, 0
          v_or_b32 {vS1}, {sT[0]}, {k.vL16}
          v_lshlrev_b32 {t[0]}, 3, {k.vTt}
          v_lshl_add_u32 {t[0]}, {k.vH}, 8, {t[0]}
          v_add_u32 {t[0]}, {L_ST2}, {t[0]}''')
    NB = 4
    acc = [v.alloc('acc0', 16), v.alloc('acc1', 16)]
    Bf = v.alloc('Bf', 4 * NB); tmp = v.alloc('tmp', 8); hp = v.alloc('hp', 8)
    st = v.alloc('st', 32); cM = v.alloc('cM', 2); cI = v.alloc('cI', 2); c0 = v.alloc('c0', 2); c1 = v.alloc('c1', 2)
    def stats_ops():
        L = [f'ds_read_b64 {st[2*q:2*q+2]}, {t[0]} offset:{512*q}' for q in range(16)]
        n = 16
        while n > 1:
            L += [f'v_pk_add_f32 {st[2*q:2*q+2]}, {st[2*q:2*q+2]}, {st[2*(q+n//2):2*(q+n//2)+2]}' for q in range(n // 2)]
            n //= 2
        S, Q = st[0:2], st[2:4]
        L += [f'v_mov_b32 {Q[0]}, {S[0]}', f'v_mov_b32 {Q[1]}, {S[1]}',
              f'v_permlane32_swap_b32 {S[0]}, {Q[0]}', f'v_permlane32_swap_b32 {S[1]}, {Q[1]}']
        for b in range(2):
            L += [f'v_mul_f32 {S[b]}, {k.sI512}, {S[b]}', f'v_mul_f32 {st[4+b]}, {S[b]}, {S[b]}',
                  f'v_fma_f32 {Q[b]}, {Q[b]}, {k.sI512}, -{st[4+b]}', f'v_max_f32 {Q[b]}, 0, {Q[b]}',
                  f'v_add_f32 {Q[b]}, {k.sEps}, {Q[b]}', f'v_rsq_f32 {st[4+b]}, {Q[b]}', f'v_sub_f32 {cM[b]}, 0, {S[b]}',
                  f'v_mul_f32 {cI[b]}, {Q[b]}, {st[4+b]}', f'v_mul_f32 {c0[b]}, {k.sC0}, {st[4+b]}',
                  f'v_mul_f32 {st[6+b]}, {st[4+b]}, {st[4+b]}', f'v_mul_f32 {st[6+b]}, {st[6+b]}, {st[4+b]}',
                  f'v_mul_f32 {c1[b]}, {k.sC1}, {st[6+b]}']
        return L
    def epi_ops(ps):
        ph, tb = ps >> 1, ps & 1
        L = k.gelu_ops(acc[ps & 1], k.CS3[16*ph:16*ph+16], (cM, tb), (c0, tb), (c1, tb), (cI, tb), hp, tmp)
        vo = vS1 if ph else k.vL16
        h = len(L) // 2
        st0 = [f's_add_u32 {sT[3]}, {sH3}, {tb * 114688}', f'buffer_store_dwordx4 {hp[0:4]}, {vo}, {k.sWS}, {sT[3]} offen offset:{2048*ph} sc1']
        st1 = [f'buffer_store_dwordx4 {hp[4:8]}, {vo}, {k.sWS}, {sT[3]} offen offset:{2048*ph+1024} sc1']
        return L[:h] + st0 + L[h:] + st1
    def rd(ps, ks): a(f'ds_read_b128 {Bf[4*(ks%NB):4*(ks%NB)+4]}, {k.vL16} offset:{(ps&1)*32768 + ks*1024}')
    for ps in range(4):
        ph, tb = ps >> 1, ps & 1
        side = []
        if ps >= 1: side = epi_ops(ps - 1)
        per = -(-len(side) // 30)
        for ks in range(32):
            if ps < 2 and ks % 16 == 0:
                a.wait_vm(toks[2 * ps + ks // 16]); a.barrier()
                if ps == 0 and ks == 0: k.T()
                for q in range(ks, ks + NB - 1): rd(ps, q)
                if ps == 0 and ks == 16: side = stats_ops(); per = 5
            elif ks == 0:
                pass
            nx = ks + NB - 1
            if ps < 2:
                if nx < (ks // 16 + 1) * 16: rd(ps, nx)
                elif ps == 1 and ks >= 16: rd(2, nx - 32)
            else:
                if nx < 32: rd(ps, nx)
                elif ps < 3: rd(ps + 1, nx - 32)
            x = acc[ps & 1]
            a(f'v_mfma_f32_32x32x16_bf16 {x}, {AG(128*ph+4*ks, 4)}, {Bf[4*(ks%NB):4*(ks%NB)+4]}, {x if ks else 0}')
            if ks >= 1 or ps == 0:
                for _ in range(per):
                    if side: a(side.pop(0))
            if ps == 0 and ks % 3 == 2: w4.fill()
            if ps == 2 and ks % 3 == 2: w4.consume()
            if ps == 2 and ks % 3 == 1: w4.fill()
            if ps == 3 and ks % 4 == 1 and w4.nc < 16: w4.consume()
            if ps == 3 and ks % 4 == 3: w4.fill()
        while side: a(side.pop(0))
        k.T()
    v.release(Bf, st)
    pc = k.poll_issue(k.vP32, sT[5])
    k.a.ins.pop(); k.a.vmq.pop()
    a(f's_add_u32 {sT[5]}, {k.sFc}, {FC - F1C}')
    a(f'buffer_load_dwordx2 {pc[0]}, {k.vP32}, {k.sWS}, {sT[5]} offen sc1')
    side = epi_ops(3)
    for n_, x in enumerate(side):
        tk = a(x)
        if n_ % 12 == 11: w4.consume(); w4.fill()
    a(f's_lshl_b32 {sT[0]}, {sJ}, 3\ns_add_u32 {sT[0]}, {sT[0]}, {k.sFr}\ns_add_u32 {sT[0]}, {sT[0]}, {F3}')
    a.wait_vm(tk)
    a.barrier()
    k.flag_store(sT[0])
    k.T()
    k.pc = pc
    v.release(acc[0], acc[1], tmp, hp, cM, cI, c0, c1, vS1, k.CS3); s.release(sH3)

def p4(k):
    a, v, s = k.a, k.v, k.s
    vL, sT, sA, sB, sW, sJ, sI = k.vL, k.sT, k.sA, k.sB, k.sW, k.sJ, k.sI
    t = k.e1t; w4 = k.w4
    k.poll_check(k.pc)
    a(f'''v_lshrrev_b32 {t[0]}, 3, {vL}
          v_mul_u32_u24 {t[0]}, {XTS}, {t[0]}
          v_and_b32 {t[1]}, 7, {vL}
          v_lshl_add_u32 {t[0]}, {t[1]}, 4, {t[0]}
          v_add_u32 {t[1]}, {8 * XTS - 1024}, {t[0]}
          s_lshl_b32 {sT[0]}, {sJ}, 2
          s_add_u32 {sT[0]}, {sT[0]}, {sW}
          s_mul_i32 {sT[0]}, {sT[0]}, {16 * XTS}
          s_lshl_b32 {sT[1]}, {sI}, 7
          s_add_u32 {sT[0]}, {sT[0]}, {sT[1]}
          s_add_u32 {sT[0]}, {sT[0]}, {WS_ST}
          s_lshl_b32 {sT[1]}, {sW}, 11
          s_add_u32 m0, {sT[1]}, {L_ST2}
          v_and_b32 {t[2]}, 1, {vL}
          v_lshlrev_b32 {t[2]}, 3, {t[2]}''')
    a(f'buffer_load_dwordx4 {t[0]}, {k.sWS}, {sT[0]} offen lds')
    a(f'buffer_load_dwordx4 {t[1]}, {k.sWS}, {sT[0]} offen offset:1024 lds')
    while w4.nc < 28: w4.fill(); w4.consume()
    a(f's_lshl_b32 {sT[4]}, {sW}, 4\ns_add_u32 {sT[4]}, {sT[4]}, {k.sFr}\ns_add_u32 {sT[4]}, {sT[4]}, {F3}')
    p = k.poll_issue(t[2], sT[4])
    vB = v.alloc('vB4', 2)
    a(f'''s_mul_i32 {sT[0]}, {sB}, 114688
          s_sub_u32 {sT[1]}, 114688, {sT[0]}
          v_add_u32 {vB[0]}, {sT[0]}, {k.vL16}
          v_add_u32 {vB[1]}, {sT[1]}, {k.vL16}
          s_mul_i32 {sT[2]}, {sI}, 229376
          s_mul_i32 {sT[3]}, {sW}, 28672
          s_add_u32 {sT[2]}, {sT[2]}, {sT[3]}
          s_add_u32 {sT[2]}, {sT[2]}, {WS_H3}''')
    acc = v.alloc('acc4', 64)
    NR = 14
    Bq = v.alloc('Bq', 8 * NR)
    k.poll_check(p)
    k.T()
    def ld(q):
        if q % 4 == 0: a(f's_add_u32 {sT[3]}, {sT[2]}, {q * 1024}')
        for tt in range(2):
            o = 8 * (q % NR) + 4 * tt
            a(f'buffer_load_dwordx4 {Bq[o:o+4]}, {vB[tt]}, {k.sWS}, {sT[3]} offen offset:{(q % 4) * 1024}')
    for q in range(NR): ld(q)
    for q in range(28):
        for tt in range(2):
            o = 8 * (q % NR) + 4 * tt
            for de in range(2):
                x = acc[16*(de+2*tt):16*(de+2*tt)+16]
                a(f'v_mfma_f32_32x32x16_bf16 {x}, {AG(8*q+4*de, 4)}, {Bq[o:o+4]}, {x if q else 0}')
        if q + NR < 28: ld(q + NR)
        if q == 0: k.T()
    v.release(Bq, vB)
    k.T()
    for x in range(1, 4):
        a(f's_xor_b32 {sT[0]}, {sW}, {x}\ns_mul_i32 {sT[0]}, {sT[0]}, 12288\nv_add_u32 {t[x]}, {sT[0]}, {k.vL16}')
    for x in range(1, 4):
        for q in range(4): a(f'ds_write_b128 {t[x]}, {acc[16*x+4*q:16*x+4*q+4]} offset:{(x-1)*4096 + q*1024}')
    a(f'''s_mul_i32 {sT[0]}, {sW}, 12288
          v_add_u32 {t[0]}, {sT[0]}, {k.vL16}
          v_bfe_u32 {t[4]}, {vL}, 2, 2
          v_lshl_add_u32 {t[4]}, {k.vH}, 2, {t[4]}
          v_lshlrev_b32 {t[4]}, 7, {t[4]}
          v_bfe_u32 {t[5]}, {vL}, 4, 1
          v_lshl_add_u32 {t[4]}, {t[5]}, 5, {t[4]}
          v_and_b32 {t[5]}, 3, {vL}
          v_lshl_add_u32 {t[4]}, {t[5]}, 3, {t[4]}
          s_lshl_b32 {sT[0]}, {sA}, 12
          s_lshl_b32 {sT[1]}, {sB}, 6
          s_add_u32 {sT[0]}, {sT[0]}, {sT[1]}
          s_add_u32 {sT[0]}, {sT[0]}, {L_ST2}
          v_add_u32 {t[4]}, {sT[0]}, {t[4]}
          v_lshlrev_b32 {t[5]}, 10, {k.vTt}
          v_lshl_add_u32 {t[5]}, {k.vH}, 4, {t[5]}
          s_lshl_b32 {sT[0]}, {sI}, 16
          s_lshl_b32 {sT[1]}, {sB}, 15
          s_add_u32 {sT[0]}, {sT[0]}, {sT[1]}
          s_lshl_b32 {sT[1]}, {sJ}, 7
          s_add_u32 {sT[0]}, {sT[0]}, {sT[1]}
          s_lshl_b32 {sT[1]}, {sA}, 6
          s_add_u32 {sT[0]}, {sT[0]}, {sT[1]}
          v_add_u32 {t[5]}, {sT[0]}, {t[5]}''')
    X = k.XN
    for q in range(8): a(f'v_pk_add_f32 {X[2*q:2*q+2]}, {X[2*q:2*q+2]}, {acc[2*q:2*q+2]}')
    a.wait_all()
    a.barrier()
    k.T()
    sv = v.alloc('sv', 8)
    for x in range(1, 4):
        for q in range(4): a(f'ds_read_b128 {acc[16*x+4*q:16*x+4*q+4]}, {t[0]} offset:{(x-1)*4096 + q*1024}')
    for q in range(4): a(f'ds_read_b64_tr_b16 {sv[2*q:2*q+2]}, {t[4]} offset:{1024*q}')
    sNL = s.alloc('nl2', 2); a(f's_mov_b32 {sNL[0]}, {fb(-1.4426950408889634)}')
    for x in range(1, 4):
        for q in range(8): a(f'v_pk_add_f32 {X[2*q:2*q+2]}, {X[2*q:2*q+2]}, {acc[16*x+2*q:16*x+2*q+2]}')
    E = acc[0:16]; S_ = acc[16:32]; U_ = acc[32:48]
    for q in range(8): a(f'v_pk_mul_f32 {E[2*q:2*q+2]}, {X[2*q:2*q+2]}, {sNL} op_sel_hi:[1,0]')
    for q in range(16): a(f'v_exp_f32 {E[q]}, {E[q]}')
    for q in range(8): a(f'v_lshlrev_b32 {S_[2*q]}, 16, {sv[q]}\nv_and_b32 {S_[2*q+1]}, 0xffff0000, {sv[q]}')
    for q in range(8): a(f'v_pk_add_f32 {E[2*q:2*q+2]}, {E[2*q:2*q+2]}, 1.0 op_sel_hi:[1,0]')
    for q in range(16): a(f'v_rcp_f32 {E[q]}, {E[q]}')
    for q in range(8): a(f'v_lshlrev_b32 {U_[2*q]}, 16, {k.U8[q]}\nv_and_b32 {U_[2*q+1]}, 0xffff0000, {k.U8[q]}')
    for q in range(8): a(f'v_pk_mul_f32 {X[2*q:2*q+2]}, {X[2*q:2*q+2]}, {S_[2*q:2*q+2]}')
    for q in range(8): a(f'v_pk_fma_f32 {X[2*q:2*q+2]}, {X[2*q:2*q+2]}, {E[2*q:2*q+2]}, {U_[2*q:2*q+2]}')
    for q in range(8): a(f'v_cvt_pk_bf16_f32 {sv[q]}, {X[2*q]}, {X[2*q+1]}')
    for pr in range(2):
        a(f'v_permlane32_swap_b32 {sv[4*pr]}, {sv[4*pr+2]}\nv_permlane32_swap_b32 {sv[4*pr+1]}, {sv[4*pr+3]}')
    for pr in range(2): a(f'buffer_store_dwordx4 {sv[4*pr:4*pr+4]}, {t[5]}, {k.sOut}, 0 offen offset:{32*pr}')
```

```python
import sys, struct
sys.path.insert(0, 'gen')
from asmlib import Asm, Regs, R

def fb(x): return '0x%08x' % struct.unpack('<I', struct.pack('<f', x))[0]

NAME = 'recurrent_scan__ssm_conv_s4d__mixer_s_mlp__prompt'
WS_H, WS_X1, WS_H3 = 0, 2 << 20, 4 << 20
WS_XT, WS_ST, WS_STAT, WS_FLAG, WS_TS = 12 << 20, 15 << 20, 18 << 20, 19 << 20, (19 << 20) + 65536
WS_SIZE = 20 << 20
XTS = 4224
F1R, F2, F3, F1C, FC = 0, 4096, 8192, 12288, 16384
UKC = 17408
L_W = 69632
L_XS = 135168
L_STATP = 145408
L_CP = 69632; CS = 4160
L_STG = 102912
L_UC = 152064; UCS = 5088; UCP = 992
L_KT = 152064 + 16; KTS = 3088
L_CSX = 162240
KG_W = 15504; KG_R = 272
L_ST2 = 69632
L_W4 = 77824
OOB = 0x80000000
import os
FINE = os.environ.get('FINE')
TSOP = 's_memtime' if os.environ.get('TSCLK') else 's_memrealtime'

class K:
    def __init__(self, stop=99, ts=False):
        self.a = Asm(); self.v = Regs('v', 256, 1); self.s = Regs('s', 100, 3)
        self.v.top = {'vts','lane','par','vWd','vW3','vnonce','flagoff','GA','vTrP','B16','h','tt','acc','U8','vCW','vCR','l16','vP8','vP32','cs3a','stA','t','CS3','D'}
        self.stop = stop; self.ts = ts; self.nts = 0

    def T(self):
        if not self.ts: return
        if self.nts: self.a(f'v_writelane_b32 {self.vTS}, {self.tsr[0]}, {self.nts - 1}')
        self.nts += 1
        self.a(f'{TSOP} {self.tsr}')

    def srd(self, name, ptr, nbytes):
        r = self.s.alloc(name, 4)
        self.a(f's_mov_b32 {r[0]}, {ptr[0]}\ns_mov_b32 {r[1]}, {ptr[1]}\ns_mov_b32 {r[2]}, {hex(nbytes)}\ns_mov_b32 {r[3]}, 0x20000')
        return r

    def sconst(self, name, val):
        r = self.s.alloc(name); self.a(f's_mov_b32 {r}, {val}'); return r

    def flag_store(self, soff):
        self.a(f'buffer_store_dwordx2 {self.vNonce}, {self.vFlagOff}, {self.sWS}, {soff} offen sc1')

    def poll_issue(self, voff, soff):
        a = self.a
        d = self.v.alloc('polld', 2)
        a(f'buffer_load_dwordx2 {d}, {voff}, {self.sWS}, {soff} offen sc1')
        return (d, voff, soff)

    def poll_check(self, p):
        a = self.a; d, voff, soff = p
        ok = a.label_name('PK'); lp = a.label_name('PL')
        a(f'v_cmp_ne_u64 vcc, {self.sNonce}, {d}')
        a.raw('s_nop 4')
        a.raw(f's_cbranch_vccz {ok}')
        a(f's_mov_b32 {self.sT[0]}, 0')
        a.label(lp)
        a.raw(f'buffer_load_dwordx2 {d}, {voff}, {self.sWS}, {soff} offen sc1')
        a.raw(f's_add_u32 {self.sT[0]}, {self.sT[0]}, 1')
        a.raw('s_waitcnt vmcnt(0)')
        a.raw(f'v_cmp_ne_u64 vcc, {self.sNonce}, {d}')
        a.raw(f's_cmp_gt_u32 {self.sT[0]}, 0x40000')
        a.raw(f's_cbranch_scc1 {ok}')
        a.raw('s_nop 2')
        a.raw(f's_cbranch_vccnz {lp}')
        a.label(ok)
        self.v.release(d)

    def gelu_ops(self, acc, cs, negm, c0r, c1r3, ir, out, tmp):
        def sel(x): return x[0], x[1]
        ops = []
        for g in range(2):
            P = range(4 * g, 4 * g + 4)
            t = lambda p: acc[2 * p:2 * p + 2]
            w = lambda p: tmp[2 * (p & 3):2 * (p & 3) + 2]
            for p in P:
                r, h = negm
                ops.append(f'v_pk_fma_f32 {t(p)}, {cs[2*p:2*p+2]}, {r}, {t(p)} op_sel:[0,{h},0] op_sel_hi:[1,{h},1]')
            for p in P: ops.append(f'v_pk_mul_f32 {w(p)}, {t(p)}, {t(p)}')
            for p in P:
                (r1, h1), (r0, h0) = c1r3, c0r
                ops.append(f'v_pk_fma_f32 {w(p)}, {w(p)}, {r1}, {r0} op_sel:[0,{h1},{h0}] op_sel_hi:[1,{h1},{h0}]')
            for p in P: ops.append(f'v_pk_mul_f32 {w(p)}, {w(p)}, {t(p)}')
            for p in P:
                ops.append(f'v_exp_f32 {w(p)[0]}, {w(p)[0]}'); ops.append(f'v_exp_f32 {w(p)[1]}, {w(p)[1]}')
            for p in P:
                r, h = ir
                ops.append(f'v_pk_fma_f32 {w(p)}, {w(p)}, {r}, {r} op_sel:[0,{h},{h}] op_sel_hi:[1,{h},{h}]')
            for p in P:
                ops.append(f'v_rcp_f32 {w(p)[0]}, {w(p)[0]}'); ops.append(f'v_rcp_f32 {w(p)[1]}, {w(p)[1]}')
            for p in P: ops.append(f'v_pk_mul_f32 {w(p)}, {w(p)}, {t(p)}')
            for p in P: ops.append(f'v_cvt_pk_bf16_f32 {out[p]}, {w(p)[0]}, {w(p)[1]}')
        return ops

    def cmul(self, d, x, y, t):
        self.a(f'v_pk_mul_f32 {t}, {x}, {y} op_sel:[0,0] op_sel_hi:[0,1]')
        self.a(f'v_pk_fma_f32 {d}, {x}, {y}, {t} op_sel:[1,1,0] op_sel_hi:[1,0,1] neg_lo:[1,0,0]')

    def prologue(self):
        a, v, s = self.a, self.v, self.s
        a('s_cmp_ge_u32 s2, 0x100')
        a.raw('s_cbranch_scc1 END')
        ka = s.alloc('ka', 16); kb = s.alloc('kb', 8); kc = s.alloc('kc', 4); kd = s.alloc('kd', 2)
        self.ka, self.kb, self.kc, self.kd = ka, kb, kc, kd
        a(f's_load_dwordx16 {ka}, s[0:1], 0\ns_load_dwordx8 {kb}, s[0:1], 64\ns_load_dwordx4 {kc}, s[0:1], 96\ns_load_dwordx2 {kd}, s[0:1], 112')
        if self.ts:
            self.tsr = s.alloc('ts', 2); self.vTS = v.alloc('vts'); self.T()
        self.sT = s.alloc('sT', 6, 2)
        sT = self.sT
        self.sI = sI = s.alloc('i'); self.sJ = sJ = s.alloc('j'); self.sW = sW = s.alloc('w')
        self.sA = sA = s.alloc('a'); self.sB = sB = s.alloc('b')
        self.vL = vL = v.alloc('lane')
        t = v.alloc('pt', 8)
        a(f'''v_lshrrev_b32 {t[0]}, 6, v0
              v_and_b32 {vL}, 63, v0
              s_and_b32 {sT[0]}, s2, 7
              s_lshr_b32 {sT[1]}, s2, 6
              v_readfirstlane_b32 {sW}, {t[0]}
              s_lshl_b32 {sT[0]}, {sT[0]}, 2
              s_add_u32 {sI}, {sT[0]}, {sT[1]}
              s_bfe_u32 {sJ}, s2, 0x30003
              s_and_b32 {sA}, {sW}, 1
              s_lshr_b32 {sB}, {sW}, 1''')
        self.sRg = sRg = s.alloc('rg'); self.sRu = sRu = s.alloc('ru'); self.sNeg = sNeg = s.alloc('neg'); self.sMag = sMag = s.alloc('mag')
        sR0 = s.alloc('r0')
        a(f'''s_bfe_u32 {sNeg}, {sJ}, 0x10001
              s_lshr_b32 {sMag}, {sJ}, 2
              s_add_u32 {sMag}, {sMag}, 1
              s_sub_u32 {sT[0]}, 2, {sMag}
              s_cmp_eq_u32 {sNeg}, 1
              s_cselect_b32 {sRg}, {sMag}, {sT[0]}
              s_cselect_b32 {sRu}, 0, 2
              s_lshl_b32 {sR0}, {sI}, 6
              s_sub_u32 {sR0}, {sR0}, {sRu}''')
        self.sD = sD = s.alloc('d')
        a(f'''s_lshl_b32 {sD}, {sJ}, 6
              s_lshl_b32 {sT[0]}, {sI}, 1
              s_add_u32 {sD}, {sD}, {sT[0]}
              s_add_u32 {sD}, {sD}, {sB}
              s_lshl_b32 {sT[0]}, {sD}, 8
              s_lshl_b32 {sT[1]}, {sA}, 7
              s_add_u32 {sT[0]}, {sT[0]}, {sT[1]}
              s_lshl_b32 {sT[1]}, {sD}, 1
              v_lshl_add_u32 {t[0]}, {vL}, 1, {sT[0]}
              v_mov_b32 {t[1]}, {sT[1]}''')
        self.vPar = par = v.alloc('par', 6, 2)
        if FINE: self.T(); self.T()
        for k in range(4): a(f'global_load_ushort {par[k]}, {t[0]}, {ka[2+2*k:4+2*k]}')
        a(f'global_load_ushort {par[4]}, {t[1]}, {ka[10:12]}')
        a(f'global_load_ushort {par[5]}, {t[1]}, {ka[12:14]}')
        if FINE: self.T()
        self.sU = self.srd('sU', ka[0:2], 2048 * 1024)
        self.sW1 = self.srd('sW1', kb[0:2], 512 * 1024)
        vU = v.alloc('vU', 4); vUX = v.alloc('vUX')
        a(f'''v_lshrrev_b32 {t[0]}, 4, {vL}
              v_and_b32 {t[1]}, 15, {vL}
              v_xor_b32 {t[1]}, {t[1]}, {t[0]}
              v_lshlrev_b32 {t[1]}, 4, {t[1]}
              s_lshl_b32 {sT[0]}, {sW}, 4
              s_add_u32 {sT[0]}, {sT[0]}, {sR0}
              v_add_u32 {t[2]}, {sT[0]}, {t[0]}
              v_lshlrev_b32 {t[2]}, 10, {t[2]}''')
        for e in range(4):
            if e == 0: a(f'v_add_u32 {vU[0]}, {t[2]}, {t[1]}')
            else:
                a(f'v_xor_b32 {t[3]}, {64*e}, {t[1]}')
                a(f'v_add_u32 {t[3]}, {3072*e}, {t[3]}')
                a(f'v_add_u32 {vU[e]}, {t[2]}, {t[3]}')
        self.vWd = vWd = v.alloc('vWd', 4)
        a(f'''v_lshrrev_b32 {t[3]}, 3, {vL}
              v_and_b32 {t[4]}, 7, {vL}
              v_bfe_u32 {t[5]}, {vL}, 4, 1
              v_lshlrev_b32 {t[5]}, 2, {t[5]}
              v_xor_b32 {t[4]}, {t[4]}, {t[5]}
              v_lshlrev_b32 {t[4]}, 4, {t[4]}
              v_lshl_add_u32 {vWd[0]}, {t[3]}, 10, {t[4]}''')
        for e in range(1, 4): a(f'v_add_u32 {vWd[e]}, {7168*e}, {vWd[0]}')
        self.vW3 = vW3 = v.alloc('vW3', 2)
        a(f'''v_mul_u32_u24 {t[3]}, 3584, {t[3]}
              v_add_u32 {vW3[0]}, {t[3]}, {t[4]}
              s_cmp_eq_u32 {sW}, 3
              s_cselect_b32 {sT[2]}, 64, 128
              v_cmp_le_u32 vcc, {sT[2]}, {t[4]}
              v_mov_b32 {t[5]}, {hex(OOB)}
              v_cndmask_b32 {vW3[0]}, {vW3[0]}, {t[5]}, vcc
              v_add_u32 {vW3[1]}, {8*3584-1024}, {vW3[0]}''')
        a(f'''s_add_u32 {sT[0]}, {sR0}, 64
              v_add_u32 {t[2]}, {sT[0]}, {t[0]}
              v_lshlrev_b32 {t[2]}, 10, {t[2]}
              s_lshl_b32 {sT[0]}, {sW}, 8
              v_add3_u32 {vUX}, {t[2]}, {t[1]}, {sT[0]}
              v_cmp_lt_u32 vcc, 31, {vL}
              v_cndmask_b32 {vUX}, {vUX}, {t[5]}, vcc
              s_mul_i32 {sT[0]}, {sW}, {UKC}
              s_add_u32 m0, {sT[0]}, 16384
              s_lshl_b32 {sT[1]}, {sW}, 12''')
        if FINE: self.T()
        a(f'buffer_load_dwordx4 {vUX}, {self.sU}, 0 offen lds')
        if FINE: self.T()
        self.sWoff = sWoff = s.alloc('woff')
        a(f'''s_lshl_b32 {sWoff}, {sW}, 15
              s_lshl_b32 {sT[0]}, {sJ}, 7
              s_add_u32 {sWoff}, {sWoff}, {sT[0]}''')
        self.p1tok = []
        for kc_ in range(4):
            a(f's_add_u32 m0, {sT[1]}, {kc_*(UKC-256)}')
            a(f's_add_u32 {sT[2]}, {sWoff}, {kc_*131072}')
            for e in range(4): a(f'buffer_load_dwordx4 {vU[e]}, {self.sU}, 0 offen offset:{1024*e+256*kc_} lds')
            a(f's_add_u32 m0, {sT[1]}, {L_W + kc_*16384}')
            for e in range(4): tk = a(f'buffer_load_dwordx4 {vWd[e]}, {self.sW1}, {sT[2]} offen offset:{1024*e} lds')
            self.p1tok.append(tk)
            if FINE and kc_ < 3: self.T()
        v.release(vU, vUX)
        s.release(ka)
        self.T()
        self.sW2 = self.srd('sW2', kb[2:4], 512 * 1024)
        self.sW3 = self.srd('sW3', kb[4:6], 512 * 3584)
        self.sW4 = self.srd('sW4', kb[6:8], 1792 * 1024)
        self.sOut = self.srd('sOut', kc[0:2], 2048 * 1024)
        self.sWS = self.srd('sWS', kd, WS_SIZE)
        s.release(kb, kd, sR0)
        self.sNonce = s.alloc('nonce', 2); self.vNonce = v.alloc('vnonce', 2); self.vFlagOff = v.alloc('flagoff')
        skip = a.label_name('NN')
        a(f'''v_cmp_eq_u32 vcc, 0, v0
              v_mov_b32 {t[0]}, 0
              v_cndmask_b32 {self.vFlagOff}, {t[5]}, {t[0]}, vcc
              s_or_b32 {sT[0]}, s2, {sW}
              s_cmp_lg_u32 {sT[0]}, 0''')
        a.raw(f's_cbranch_scc1 {skip}')
        a.raw(f's_memrealtime {self.sNonce}')
        a.raw('s_waitcnt lgkmcnt(0)')
        a.raw(f's_or_b32 {self.sNonce[0]}, {self.sNonce[0]}, 1')
        a.raw(f'v_mov_b32 {self.vNonce[0]}, {self.sNonce[0]}')
        a.raw(f'v_mov_b32 {self.vNonce[1]}, {self.sNonce[1]}')
        a.raw('s_mov_b64 exec, 1')
        a.raw(f'global_store_dwordx2 {t[0]}, {self.vNonce}, {kc[2:4]} sc1')
        a.raw('s_mov_b64 exec, -1')
        a.label(skip)
        v.release(t)

    def kchains(self):
        a, v, s = self.a, self.v, self.s
        par = self.vPar; sT = self.sT
        t = v.alloc('kt', 8); z1 = v.alloc('z1', 2); z8 = v.alloc('z8', 2); z128 = v.alloc('z128', 2)
        g = v.alloc('g', 16); tm = v.alloc('tm', 2)
        self.KP = KP = v.alloc('KP', 57, 1)
        sL2 = self.sconst('log2e', fb(1.4426950408889634)); self.sL2 = sL2
        for k in range(6): a(f'v_lshlrev_b32 {par[k]}, 16, {par[k]}')
        a(f'''v_mul_f32 {t[0]}, {sL2}, {par[0]}
              v_mul_f32 {t[1]}, {sL2}, {par[4]}
              v_exp_f32 {t[0]}, {t[0]}
              v_exp_f32 {t[1]}, {t[1]}
              v_cvt_pk_bf16_f32 {t[0]}, {t[0]}, {t[1]}
              v_and_b32 {t[1]}, 0xffff0000, {t[0]}
              v_lshlrev_b32 {t[0]}, 16, {t[0]}
              v_mul_f32 {t[0]}, {t[0]}, {t[1]}
              v_mul_f32 {t[2]}, {par[1]}, {t[1]}
              v_mul_f32 {g[0]}, {par[2]}, {t[1]}
              v_mul_f32 {g[1]}, {par[3]}, {t[1]}
              v_mul_f32 {t[0]}, {fb(-1.4426950408889634)}, {t[0]}
              v_mul_f32 {t[2]}, 0.15915494, {t[2]}
              v_max_f32 {t[3]}, |{g[0]}|, |{g[1]}|''')
        for sh in ('row_shr:1', 'row_shr:2', 'row_shr:4', 'row_shr:8', 'row_bcast:15', 'row_bcast:31'):
            a(f'v_max_f32_dpp {t[3]}, {t[3]}, {t[3]} {sh} row_mask:0xf bank_mask:0xf')
        for z, p in ((z1, 1.0), (z8, 8.0), (z128, 128.0)):
            a(f'''v_mul_f32 {t[4]}, {fb(p)}, {t[0]}
                  v_mul_f32 {t[5]}, {fb(p)}, {t[2]}
                  v_exp_f32 {t[4]}, {t[4]}
                  v_fract_f32 {t[5]}, {t[5]}
                  v_cos_f32 {z[0]}, {t[5]}
                  v_sin_f32 {z[1]}, {t[5]}
                  v_mul_f32 {z[0]}, {z[0]}, {t[4]}''')
            a(f'v_mul_f32 {z[1]}, {z[1]}, {t[4]}' if p != 8.0 else f'v_mul_f32 {z[1]}, -{z[1]}, {t[4]}')
        self.sKinv = s.alloc('kinv')
        a(f'''v_readlane_b32 {sT[0]}, {t[3]}, 63
              s_lshr_b32 {sT[0]}, {sT[0]}, 23
              s_max_u32 {sT[0]}, {sT[0]}, 20
              s_min_u32 {sT[0]}, {sT[0]}, 240
              s_sub_u32 {sT[1]}, 264, {sT[0]}
              s_lshl_b32 {sT[1]}, {sT[1]}, 23
              s_sub_u32 {sT[0]}, {sT[0]}, 9
              s_lshl_b32 {self.sKinv}, {sT[0]}, 23
              v_mul_f32 {g[0]}, {sT[1]}, {g[0]}
              v_mul_f32 {g[1]}, {sT[1]}, {g[1]}''')
        G = lambda b: g[2 * b:2 * b + 2]
        pk = lambda row, x: a(f'v_cvt_pk_f16_f32 {KP[row]}, {x[0]}, {x[1]}')
        e = t[4:6]; tm2 = t[6:8]
        a(f'v_mov_b32 {KP[41]}, 0x3c00')
        pk(42, z8)
        pk(0, G(0))
        ecur = [z8]
        def estep(k):
            self.cmul(e, ecur[0], z8, tm2); ecur[0] = e; pk(41 + k, e)
        ek = 2
        for b in range(1, 8):
            self.cmul(G(b), G(b - 1), z1, tm); pk(b, G(b))
            estep(ek); ek += 1
        for m in range(1, 17):
            ee = 0 if m < 2 else 1 if m < 4 else 2 if m < 8 else 3
            for b in range(0, 8, 1 << ee):
                self.cmul(G(b), G(b), z128, tm); pk(8 * ee + ((8 * m + b) >> ee), G(b))
            if m >= 8 and ek < 16: estep(ek); ek += 1
        assert ek == 16
        v.release(z1, z8, z128, g, tm)
        self.GA = GA = v.alloc('GA', 11, 1)
        sX = self.sconst('gx', hex((L_KT - 68096) & 0xffffffff))
        a(f'''v_lshlrev_b32 {t[0]}, 3, v0
              v_sub_u32 {t[0]}, 2047, {t[0]}
              v_cvt_f32_i32 {t[1]}, {t[0]}
              v_lshlrev_b32 {t[0]}, 2, {t[0]}
              v_add_u32 {t[0]}, {L_KT}, {t[0]}''')
        for k in range(0, 12, 2):
            a(f'v_add_f32 {t[2]}, {fb(-k)}, {t[1]}\nv_add_f32 {t[3]}, {fb(-k-1)}, {t[1]}')
            a(f'v_max_f32 {t[2]}, {fb(128.0)}, {t[2]}\nv_max_f32 {t[3]}, {fb(128.0)}, {t[3]}')
            a(f'v_cvt_pk_bf16_f32 {t[2]}, {t[2]}, {t[3]}')
            for q in range(2):
                if k + q > 10: continue
                a(f'v_mad_u32_u16 {t[4]}, {t[2]}, 4, {sX} op_sel:[{q},0,0,0]')
                a(f'v_subrev_u32 {t[5]}, {4*(k+q)}, {t[0]}')
                a(f'v_min_i32 {GA[k+q]}, {t[4]}, {t[5]}')
        s.release(sX)
        a(f'''v_mov_b32 {t[4]}, 0
              v_mov_b32 {t[5]}, 0
              v_mov_b32 {t[6]}, 0
              v_mov_b32 {t[7]}, 0
              v_lshlrev_b32 {t[0]}, 4, v0
              v_add_u32 {t[0]}, {L_UC}, {t[0]}
              ds_write_b128 {t[0]}, {t[4:8]}
              ds_write_b128 {t[0]}, {t[4:8]} offset:4096''')
        v.release(t)

    def p1(self):
        a, v, s = self.a, self.v, self.s
        vL, sT, sA, sB, sW, sJ, sI = self.vL, self.sT, self.sA, self.sB, self.sW, self.sJ, self.sI
        t = v.alloc('t', 8)
        vB = v.alloc('vB', 8); vAe = v.alloc('vAe'); vAo = v.alloc('vAo')
        self.vTr = vTr = v.alloc('vTrP')
        self.B16 = B16 = v.alloc('B16', 4)
        self.vH = vH = v.alloc('h'); self.vTt = vTt = v.alloc('tt')
        a(f'''v_and_b32 {vTt}, 31, {vL}
              v_lshrrev_b32 {vH}, 5, {vL}
              s_lshl_b32 {sT[0]}, {sB}, 5
              s_add_u32 {sT[1]}, {sT[0]}, {self.sRg}
              v_add_u32 {t[0]}, {sT[1]}, {vTt}
              v_and_b32 {t[1]}, 15, {t[0]}
              v_xor_b32 {t[1]}, {t[1]}, {vH}
              s_lshl_b32 {sT[2]}, {sA}, 1
              v_xor_b32 {t[1]}, {sT[2]}, {t[1]}
              v_lshlrev_b32 {t[1]}, 4, {t[1]}
              v_lshl_add_u32 {vB[0]}, {t[0]}, 8, {t[1]}''')
        for k in range(1, 8): a(f'v_xor_b32 {vB[k]}, {32*k}, {vB[0]}')
        vSW = v.alloc('vSW'); vSG = v.alloc('vSG'); vSU = v.alloc('vSU'); vUo = v.alloc('vUo')
        a(f'''v_lshlrev_b32 {vSG}, 5, {t[0]}
              v_add_u32 {vSG}, {L_STATP}, {vSG}
              v_add_u32 {t[2]}, {sT[2]}, {vH}
              v_lshl_add_u32 {vSW}, {t[2]}, 3, {vSG}
              s_add_u32 {sT[1]}, {sT[0]}, {self.sRu}
              v_add_u32 {t[0]}, {sT[1]}, {vTt}
              v_lshlrev_b32 {vSU}, 5, {t[0]}
              v_add_u32 {vSU}, {L_STATP}, {vSU}
              s_and_b32 {sT[1]}, {sJ}, 1
              s_lshl_b32 {sT[1]}, {sT[1]}, 3
              s_lshl_b32 {sT[3]}, {sA}, 2
              s_add_u32 {sT[1]}, {sT[1]}, {sT[3]}
              v_and_b32 {t[1]}, 15, {t[0]}
              v_xor_b32 {t[1]}, {sT[1]}, {t[1]}
              v_lshlrev_b32 {t[1]}, 4, {t[1]}
              v_lshl_add_u32 {t[1]}, {t[0]}, 8, {t[1]}
              v_lshl_add_u32 {t[1]}, {vH}, 3, {t[1]}
              s_lshr_b32 {sT[1]}, {sJ}, 1
              s_mul_i32 {sT[1]}, {sT[1]}, {UKC}
              v_add_u32 {vUo}, {sT[1]}, {t[1]}''')
        a(f'''v_bfe_u32 {t[0]}, {vL}, 2, 2
              v_and_b32 {t[1]}, 3, {vL}
              v_bfe_u32 {t[2]}, {vL}, 4, 1
              v_lshlrev_b32 {t[1]}, 3, {t[1]}
              v_lshl_add_u32 {t[1]}, {t[2]}, 5, {t[1]}
              v_lshrrev_b32 {t[2]}, 1, {t[0]}
              v_lshl_add_u32 {t[1]}, {t[2]}, 6, {t[1]}
              v_lshl_add_u32 {t[1]}, {t[0]}, 7, {t[1]}
              v_lshl_add_u32 {vTr}, {vH}, 9, {t[1]}
              v_lshl_add_u32 {t[1]}, {vH}, 10, {t[1]}
              s_lshl_b32 {sT[1]}, {sA}, 6
              v_xor_b32 {t[1]}, {sT[1]}, {t[1]}
              s_lshl_b32 {sT[1]}, {sA}, 11
              s_add_u32 {sT[3]}, {sT[1]}, {L_W}
              s_sub_u32 {sT[1]}, {L_W}, {sT[1]}
              v_add_u32 {vAe}, {sT[3]}, {t[1]}
              v_add_u32 {vAo}, {sT[1]}, {t[1]}
              v_lshrrev_b32 {t[0]}, 3, {vL}
              v_lshrrev_b32 {t[1]}, 4, {vL}
              v_xor_b32 {t[0]}, {t[0]}, {t[1]}
              v_and_b32 {t[0]}, 1, {t[0]}
              v_cmp_eq_u32 vcc, 0, {t[0]}
              v_mov_b32 {t[1]}, 0x3f803f80
              v_cndmask_b32 {B16[0]}, 0, {t[1]}, vcc
              v_cndmask_b32 {B16[1]}, 0, {t[1]}, vcc
              v_cndmask_b32 {B16[2]}, 0, {t[1]}, vcc
              v_cndmask_b32 {B16[3]}, 0, {t[1]}, vcc''')
        self.sOnes = sOnes = self.sconst('ones', '0x3f803f80')
        acc = v.alloc('acc', 16); csa = v.alloc('csa', 4); SQ = v.alloc('SQ', 2)
        NB = 4
        Bf = v.alloc('Bf', 4 * NB); Af = v.alloc('Af', 4 * NB)
        a(f'v_mov_b32 {SQ[0]}, 0\nv_mov_b32 {SQ[1]}, 0')
        def rd(ks):
            q = ks % NB
            a(f'ds_read_b128 {Bf[4*q:4*q+4]}, {vB[ks&7]} offset:{(ks>>3)*UKC}')
            ad = vAo if ks & 1 else vAe
            a(f'ds_read_b64_tr_b16 {Af[4*q:4*q+2]}, {ad} offset:{ks*2048}')
            a(f'ds_read_b64_tr_b16 {Af[4*q+2:4*q+4]}, {ad} offset:{ks*2048+512}')
        for kc_ in range(4):
            a.wait_vm(self.p1tok[kc_]); a.barrier()
            if kc_ in (0, 3): self.T()
            k0 = 8 * kc_
            for ks in range(k0, k0 + NB - 1): rd(ks)
            for ks in range(k0, k0 + 8):
                if ks + NB - 1 < k0 + 8: rd(ks + NB - 1)
                q = ks % NB
                a(f'v_mfma_f32_32x32x16_bf16 {acc}, {Af[4*q:4*q+4]}, {Bf[4*q:4*q+4]}, {acc if ks else 0}')
                a(f'v_mfma_f32_16x16x32_bf16 {csa}, {Af[4*q:4*q+4]}, {B16}, {csa if ks else 0}')
                if not ks & 1:
                    for d in range(4):
                        a(f'v_dot2c_f32_bf16 {SQ[0]}, {sOnes}, {Bf[4*q+d]}')
                        a(f'v_dot2c_f32_bf16 {SQ[1]}, {Bf[4*q+d]}, {Bf[4*q+d]}')
        X = Bf[0:4]; XS = Bf[4:6]
        self.U8 = U8 = v.alloc('U8', 8)
        a(f'''s_cmp_eq_u32 {self.sNeg}, 1
              s_cselect_b32 {sT[0]}, 0, 64
              v_bfe_u32 {t[0]}, {vL}, 4, 1
              v_add_u32 {t[1]}, {sT[0]}, {t[0]}
              v_and_b32 {t[2]}, 15, {vL}
              v_lshlrev_b32 {t[2]}, 4, {t[2]}
              v_lshl_add_u32 {t[2]}, {t[1]}, 8, {t[2]}
              s_mul_i32 {sT[1]}, {sW}, {UKC}
              v_add_u32 {t[2]}, {sT[1]}, {t[2]}
              ds_read_b128 {X}, {t[2]}''')
        for jj in range(4):
            if jj: a(f'v_xor_b32 {t[3]}, {16*jj}, {vUo}')
            a(f'ds_read_b64 {U8[2*jj:2*jj+2]}, {t[3] if jj else vUo}')
        a(f'''v_lshlrev_b32 {t[1]}, 5, {t[1]}
              s_lshl_b32 {sT[1]}, {sW}, 3
              s_add_u32 {sT[1]}, {sT[1]}, {L_STATP}
              v_add_u32 {t[1]}, {sT[1]}, {t[1]}
              s_cmp_eq_u32 {self.sNeg}, 1
              s_cselect_b32 {sT[2]}, 15, 31
              s_lshl_b32 {sT[2]}, 1, {sT[2]}
              s_cmp_eq_u32 {self.sMag}, 1
              s_cselect_b32 {sT[2]}, {sT[2]}, 0x80008000
              s_mov_b32 {sT[3]}, 0
              v_mov_b32 {XS[0]}, 0
              v_mov_b32 {XS[1]}, 0''')
        for d in range(4):
            a(f'v_dot2c_f32_bf16 {XS[0]}, {sOnes}, {X[d]}')
            a(f'v_dot2c_f32_bf16 {XS[1]}, {X[d]}, {X[d]}')
        a(f'ds_write_b64 {vSW}, {SQ}')
        for sh in (1, 2, 4, 8):
            a(f'v_add_f32_dpp {XS[0]}, {XS[0]}, {XS[0]} row_shr:{sh} row_mask:0xf bank_mask:0xf bound_ctrl:0')
            a(f'v_add_f32_dpp {XS[1]}, {XS[1]}, {XS[1]} row_shr:{sh} row_mask:0xf bank_mask:0xf bound_ctrl:0')
        a(f's_mov_b64 exec, {sT[2:4]}')
        a(f'ds_write_b64 {t[1]}, {XS}')
        self.vCW = vCW = v.alloc('vCW'); self.vCR = vCR = v.alloc('vCR')
        a(f'''s_mov_b64 exec, -1
              v_bfe_u32 {t[0]}, {vL}, 3, 1
              v_lshrrev_b32 {t[2]}, 4, {vL}
              v_lshlrev_b32 {t[2]}, 4, {t[2]}
              v_lshl_add_u32 {t[0]}, {t[0]}, 6, {t[2]}
              s_lshl_b32 {sT[0]}, {sW}, 8
              s_add_u32 {sT[0]}, {sT[0]}, {L_CSX}
              v_add_u32 {vCW}, {sT[0]}, {t[0]}
              v_lshl_add_u32 {vCR}, {vH}, 4, {sT[0]}
              s_mov_b32 exec_lo, 0x01010101
              s_mov_b32 exec_hi, 0x01010101
              ds_write_b128 {vCW}, {csa}
              s_mov_b64 exec, -1''')
        a.barrier()
        self.T()
        a(f's_lshl_b32 {sT[1]}, {sW}, 12')
        for kc_ in range(4):
            a(f's_add_u32 m0, {sT[1]}, {L_W + kc_*16384}')
            a(f's_add_u32 {sT[2]}, {self.sWoff}, {kc_*131072}')
            for e in range(4): a(f'buffer_load_dwordx4 {self.vWd[e]}, {self.sW2}, {sT[2]} offen offset:{1024*e} lds')
        zero = v.alloc('zero'); a(f'v_mov_b32 {zero}, 0')
        a(f'global_load_dwordx2 {self.vNonce}, {zero}, {self.kc[2:4]} sc1')
        cs = v.alloc('cs', 16); sg = v.alloc('sg', 8); su = v.alloc('su', 8)
        a(f'ds_read_b128 {sg[0:4]}, {vSG}\nds_read_b128 {sg[4:8]}, {vSG} offset:16\nds_read_b128 {su[0:4]}, {vSU}\nds_read_b128 {su[4:8]}, {vSU} offset:16')
        for jj in range(4): a(f'ds_read_b128 {cs[4*jj:4*jj+4]}, {vCR} offset:{32*jj}')
        sI512 = self.sconst('i512', fb(1.0 / 512)); sEps = self.sconst('eps', fb(1e-5))
        self.sI512, self.sEps = sI512, sEps
        self.sC0 = self.sconst('c0', fb(-2.302208198)); self.sC1 = self.sconst('c1', fb(-0.1029432397))
        for x in (sg, su):
            a(f'''v_pk_add_f32 {x[0:2]}, {x[0:2]}, {x[2:4]}
                  v_pk_add_f32 {x[4:6]}, {x[4:6]}, {x[6:8]}
                  v_pk_add_f32 {x[0:2]}, {x[0:2]}, {x[4:6]}
                  v_mul_f32 {x[0]}, {sI512}, {x[0]}
                  v_mul_f32 {x[2]}, {x[0]}, {x[0]}
                  v_fma_f32 {x[1]}, {x[1]}, {sI512}, -{x[2]}
                  v_max_f32 {x[1]}, 0, {x[1]}
                  v_add_f32 {x[2]}, {sEps}, {x[1]}
                  v_rsq_f32 {x[2]}, {x[2]}''')
        a(f'''v_mul_f32 {sg[3]}, {sg[2]}, {sg[2]}
              v_fma_f32 {sg[3]}, {sg[3]}, {sg[1]}, {sEps}
              v_rsq_f32 {sg[3]}, {sg[3]}
              v_sub_f32 {sg[0]}, 0, {sg[0]}
              v_mul_f32 {sg[2]}, {sg[2]}, {sg[3]}
              v_rcp_f32 {sg[1]}, {sg[2]}
              v_mul_f32 {sg[4]}, {self.sC0}, {sg[2]}
              v_mul_f32 {sg[5]}, {sg[2]}, {sg[2]}
              v_mul_f32 {sg[5]}, {sg[5]}, {sg[2]}
              v_mul_f32 {sg[5]}, {self.sC1}, {sg[5]}''')
        hp = v.alloc('hp', 8)
        for op in self.gelu_ops(acc, cs, (sg[0:2], 0), (sg[4:6], 0), (sg[4:6], 1), (sg[0:2], 1), hp, Af): a(op)
        self.vL16 = vL16 = v.alloc('l16')
        self.sHo = sHo = s.alloc('ho')
        a(f'''v_lshlrev_b32 {vL16}, 4, {vL}
              s_lshl_b32 {sHo}, {sI}, 16
              s_lshl_b32 {sT[0]}, {sB}, 15
              s_add_u32 {sHo}, {sHo}, {sT[0]}
              s_lshl_b32 {sT[0]}, {sJ}, 12
              s_add_u32 {sHo}, {sHo}, {sT[0]}
              s_lshl_b32 {sT[0]}, {sA}, 11
              s_add_u32 {sHo}, {sHo}, {sT[0]}''')
        a(f'buffer_store_dwordx4 {hp[0:4]}, {vL16}, {self.sWS}, {sHo} offen sc1')
        htok = a(f'buffer_store_dwordx4 {hp[4:8]}, {vL16}, {self.sWS}, {sHo} offen offset:1024 sc1')
        self.XN = XN = acc
        a(f'v_mul_f32 {su[3]}, {su[0]}, {su[2]}\nv_sub_f32 {su[3]}, 0, {su[3]}')
        for p in range(8):
            a(f'v_lshlrev_b32 {XN[2*p]}, 16, {U8[p]}\nv_and_b32 {XN[2*p+1]}, 0xffff0000, {U8[p]}')
        for p in range(8): a(f'v_pk_fma_f32 {XN[2*p:2*p+2]}, {XN[2*p:2*p+2]}, {su[2:4]}, {su[2:4]} op_sel:[0,0,1] op_sel_hi:[1,0,1]')
        xp = cs[0:8]
        for p in range(8): a(f'v_cvt_pk_bf16_f32 {xp[p]}, {XN[2*p]}, {XN[2*p+1]}')
        a(f'''s_mul_i32 {sT[0]}, {sW}, 2560
              s_add_u32 {sT[0]}, {sT[0]}, {L_XS}
              v_mul_u32_u24 {t[0]}, 72, {vTt}
              v_lshl_add_u32 {t[0]}, {vH}, 3, {t[0]}
              v_add_u32 {t[0]}, {sT[0]}, {t[0]}''')
        for jj in range(4): a(f'ds_write_b64 {t[0]}, {xp[2*jj:2*jj+2]} offset:{16*jj}')
        a(f'''v_bfe_u32 {t[1]}, {vL}, 2, 2
              v_lshl_add_u32 {t[1]}, {vH}, 3, {t[1]}
              v_mul_u32_u24 {t[1]}, 72, {t[1]}
              v_and_b32 {t[2]}, 3, {vL}
              v_bfe_u32 {t[3]}, {vL}, 4, 1
              v_lshlrev_b32 {t[2]}, 3, {t[2]}
              v_lshl_add_u32 {t[2]}, {t[3]}, 5, {t[2]}
              v_add3_u32 {t[1]}, {t[1]}, {t[2]}, {sT[0]}''')
        xt = cs[8:16]
        for rho in range(2):
            for io in range(2):
                a(f'ds_read_b64_tr_b16 {xt[4*rho+2*io:4*rho+2*io+2]}, {t[1]} offset:{72*(16*rho+4*io)}')
        a(f'''v_mul_u32_u24 {t[2]}, {XTS}, {vTt}
              v_lshl_add_u32 {t[2]}, {vH}, 4, {t[2]}
              s_lshl_b32 {sT[0]}, {sJ}, 1
              s_add_u32 {sT[0]}, {sT[0]}, {sA}
              s_mul_i32 {sT[0]}, {sT[0]}, {32*XTS}
              s_lshl_b32 {sT[1]}, {sI}, 7
              s_add_u32 {sT[0]}, {sT[0]}, {sT[1]}
              s_lshl_b32 {sT[1]}, {sB}, 6
              s_add_u32 {sT[0]}, {sT[0]}, {sT[1]}
              s_add_u32 {sT[0]}, {sT[0]}, {WS_XT}''')
        a(f'buffer_store_dwordx4 {xt[0:4]}, {t[2]}, {self.sWS}, {sT[0]} offen sc1')
        self.xttok = a(f'buffer_store_dwordx4 {xt[4:8]}, {t[2]}, {self.sWS}, {sT[0]} offen offset:32 sc1')
        ok = a.label_name('NK'); lp = a.label_name('NL')
        a(f'v_readfirstlane_b32 {self.sNonce[0]}, {self.vNonce[0]}\nv_readfirstlane_b32 {self.sNonce[1]}, {self.vNonce[1]}')
        a(f's_cmp_lg_u32 {self.sNonce[0]}, 0')
        a.raw(f's_cbranch_scc1 {ok}')
        a.raw(f's_mov_b32 {sT[0]}, 0')
        a.label(lp)
        a.raw(f'global_load_dwordx2 {self.vNonce}, {zero}, {self.kc[2:4]} sc1')
        a.raw(f's_add_u32 {sT[0]}, {sT[0]}, 1')
        a.raw('s_waitcnt vmcnt(0)')
        a.raw(f'v_readfirstlane_b32 {self.sNonce[0]}, {self.vNonce[0]}')
        a.raw(f'v_readfirstlane_b32 {self.sNonce[1]}, {self.vNonce[1]}')
        a.raw(f's_cmp_gt_u32 {sT[0]}, 0x40000')
        a.raw(f's_cbranch_scc1 {ok}')
        a.raw(f's_cmp_eq_u32 {self.sNonce[0]}, 0')
        a.raw(f's_cbranch_scc1 {lp}')
        a.label(ok)
        self.sFr = sFr = s.alloc('fr'); self.sFc = sFc = s.alloc('fc')
        a(f'''s_lshl_b32 {sFr}, {sI}, 7
              s_add_u32 {sFr}, {sFr}, {WS_FLAG}
              s_lshl_b32 {sFc}, {sJ}, 8
              s_add_u32 {sFc}, {sFc}, {WS_FLAG + F1C}
              s_lshl_b32 {sT[0]}, {sJ}, 3
              s_add_u32 {sT[0]}, {sT[0]}, {sFr}''')
        a.wait_vm(htok)
        a.barrier()
        self.flag_store(sT[0])
        self.T()
        v.release(t, vB, vAe, vAo, vSW, vSG, vSU, vUo, csa, SQ, Bf, Af, cs, sg, su, hp, zero)

    def finish(self):
        a = self.a
        if self.ts:
            self.T()
            a.wait_all()
            self.T()
            o = self.v.alloc('tso')
            a(f's_lshl_b32 {self.sT[0]}, s2, 10\ns_lshl_b32 {self.sT[1]}, {self.sW}, 8\ns_add_u32 {self.sT[0]}, {self.sT[0]}, {self.sT[1]}\ns_add_u32 {self.sT[0]}, {self.sT[0]}, {WS_TS}')
            a(f'v_and_b32 {o}, 63, v0\nv_lshlrev_b32 {o}, 2, {o}')
            a(f'buffer_store_dword {self.vTS}, {o}, {self.sWS}, {self.sT[0]} offen')
        a.wait_all()
        a.label('END')
        a.raw('s_endpgm')

    def build(self):
        from phases2 import edge1, p2, edge2, p3, p4
        steps = [K.prologue, K.kchains, K.p1, edge1, p2, edge2, p3, p4]
        for n, f in enumerate(steps):
            if n > self.stop: break
            self.a.comment(f'---- {f.__name__} ----')
            f(self)
        self.finish()
        hdr = open(f'cdna_kernels/{NAME}.s.ref').read()
        top = hdr[:hdr.index('; @launch')]
        return top + f'''; @launch grid=(256,1,1) block=(256,1,1) lds=163840
.amdgcn_target "amdgcn-amd-amdhsa--gfx950"
.text
.globl {NAME}_kernel
.p2align 8
.type {NAME}_kernel,@function
{NAME}_kernel:
{self.a.text()}
.section .rodata,"a"
.p2align 6
.amdhsa_kernel {NAME}_kernel
  .amdhsa_next_free_vgpr 512
  .amdhsa_next_free_sgpr 102
  .amdhsa_accum_offset 256
  .amdhsa_group_segment_fixed_size 0
  .amdhsa_kernarg_size 120
  .amdhsa_user_sgpr_count 2
  .amdhsa_user_sgpr_kernarg_segment_ptr 1
  .amdhsa_system_sgpr_workgroup_id_x 1
.end_amdhsa_kernel
'''

if __name__ == '__main__':
    import argparse
    ap = argparse.ArgumentParser()
    ap.add_argument('--stop', type=int, default=99); ap.add_argument('--ts', action='store_true'); ap.add_argument('-o', default=f'cdna_kernels/{NAME}.s')
    g = ap.parse_args()
    k = K(g.stop, g.ts)
    open(g.o, 'w').write(k.build())
    print('vgpr hi', k.v.hi, 'sgpr hi', k.s.hi, 'instrs', len(k.a.ins))
```

```python
import re

REG_RE = re.compile(r'\b([vas])\[(\d+):(\d+)\]|\b([vas])(\d+)\b|\b(vcc|exec|m0|scc)\b')

def regs_of(txt):
    out = []
    for m in REG_RE.finditer(txt):
        if m.group(1):
            out += [(m.group(1), k) for k in range(int(m.group(2)), int(m.group(3)) + 1)]
        elif m.group(4):
            out.append((m.group(4), int(m.group(5))))
        else:
            out.append((m.group(6), 0))
    return out

def split_ops(s):
    out, depth, cur = [], 0, ''
    for ch in s:
        if ch == '[': depth += 1
        if ch == ']': depth -= 1
        if ch == ',' and depth == 0:
            out.append(cur.strip()); cur = ''
        else:
            cur += ch
    if cur.strip(): out.append(cur.strip())
    return out

TRANS = ('v_exp_f32', 'v_log_f32', 'v_rcp_f32', 'v_rsq_f32', 'v_sqrt_f32', 'v_sin_f32', 'v_cos_f32')

class I:
    __slots__ = ('txt', 'op', 'kind', 'defs', 'uses', 'passes', 'A', 'B', 'C', 'mods', 'label')
    def __init__(self, txt):
        self.txt = txt
        self.label = txt.endswith(':')
        t = txt.strip()
        sp = t.split(None, 1)
        self.op = sp[0]
        rest = sp[1] if len(sp) > 1 else ''
        ops = split_ops(rest)
        mods = ''
        if ops:
            last = ops[-1]
            depth = 0
            for k, ch in enumerate(last):
                if ch == '[': depth += 1
                if ch == ']': depth -= 1
                if ch == ' ' and depth == 0:
                    mods = last[k:]; ops[-1] = last[:k]; break
        self.mods = mods
        op = self.op
        self.passes = 0; self.A = self.B = self.C = ()
        R = [regs_of(o) for o in ops]
        flat = lambda L: [r for x in L for r in x]
        defs, uses = [], []
        if self.label:
            self.kind = 'label'
        elif op.startswith('v_mfma'):
            self.kind = 'mfma'
            self.passes = 8 if '32x32' in op else 4
            defs = R[0]; self.A, self.B, self.C = tuple(R[1]), tuple(R[2]), tuple(R[3])
            uses = R[1] + R[2] + R[3]
        elif op.startswith('v_'):
            self.kind = 'valu'
            if op.startswith('v_cmp'):
                defs = R[0]; uses = flat(R[1:])
            elif op.startswith('v_permlane') or op.startswith('v_swap'):
                defs = R[0] + R[1]; uses = R[0] + R[1]
            elif op.startswith(('v_add_co', 'v_sub_co', 'v_addc_co', 'v_subb_co')):
                defs = R[0] + R[1]; uses = flat(R[2:])
            else:
                defs = R[0]; uses = flat(R[1:])
                if op.startswith(('v_fmac', 'v_dot2c', 'v_pk_fmac', 'v_writelane')) or '_dpp' in op or 'UNUSED_PRESERVE' in mods:
                    uses = uses + R[0]
                if op.startswith('v_cndmask') and len(ops) == 3:
                    uses = uses + [('vcc', 0)]
        elif op.startswith('ds_'):
            self.kind = 'ds'
            if op.startswith(('ds_read', 'ds_bpermute', 'ds_permute', 'ds_swizzle')):
                defs = R[0]; uses = flat(R[1:])
                if 'd16' in op: uses = uses + R[0]
            else:
                uses = flat(R)
        elif op.startswith('buffer_') or op.startswith('global_'):
            self.kind = 'vm'
            if op.startswith(('buffer_inv', 'buffer_wbl2')):
                pass
            elif ' lds' in mods + ' ' or '_lds_' in op:
                uses = flat(R) + [('m0', 0)]
            elif '_load' in op:
                defs = R[0]; uses = flat(R[1:])
            else:
                uses = flat(R)
        elif op.startswith(('s_load', 's_memrealtime', 's_memtime', 's_buffer_load')):
            self.kind = 'smem'
            defs = R[0]; uses = flat(R[1:])
        elif op.startswith('s_'):
            self.kind = 'salu'
            if op.startswith(('s_cmp', 's_bitcmp')):
                uses = flat(R); defs = [('scc', 0)]
            elif op.startswith(('s_waitcnt', 's_nop', 's_barrier', 's_branch', 's_cbranch', 's_endpgm', 's_sleep', 's_setprio')):
                pass
            else:
                defs = R[0] if R else []; uses = flat(R[1:])
                if 'saveexec' in op: defs = defs + [('exec', 0)]
        else:
            self.kind = 'other'
        if ('vcc', 0) in defs: pass
        self.defs, self.uses = defs, uses

def states(x):
    if x.label: return 0
    if x.op == 's_nop': return int(x.txt.split()[1]) + 1
    return 1

def need_gap(p, c):
    n = 0
    pd = set(p.defs)
    if p.kind == 'mfma':
        big = p.passes == 8
        if c.kind == 'mfma':
            if pd & (set(c.A) | set(c.B)): n = max(n, 12 if big else 8)
            if pd & set(c.C):
                if not (tuple(p.defs) == tuple(c.C) and p.passes == c.passes): n = max(n, 10 if big else 6)
            if pd & set(c.defs) and not (tuple(p.defs) == tuple(c.C) and p.passes == c.passes):
                n = max(n, 10 if big else 6)
        elif c.kind in ('valu', 'ds', 'vm'):
            if pd & (set(c.uses) | set(c.defs)): n = max(n, 12 if big else 8)
        if c.kind == 'valu' and set(p.C) & set(c.defs): n = max(n, 7 if big else 3)
    elif p.kind == 'valu':
        vd = {r for r in pd if r[0] in 'va'}
        sd = {r for r in pd if r[0] in ('s', 'vcc')}
        if c.kind == 'mfma' and vd & set(c.uses): n = max(n, 2)
        if c.kind == 'valu':
            cu = set(c.uses)
            if sd & cu: n = max(n, 4 if c.op.startswith(('v_readlane', 'v_writelane')) else 2)
            if vd & cu:
                if '_dpp' in c.op: n = max(n, 2)
                if c.op.startswith(('v_readfirstlane', 'v_readlane')): n = max(n, 1)
                if c.op.startswith('v_permlane'): n = max(n, 2)
                if p.op.startswith(TRANS) and not c.op.startswith(TRANS): n = max(n, 1)
            if vd & (cu | set(c.defs)):
                if 'dst_sel:WORD' in p.mods or 'dst_sel:BYTE' in p.mods: n = max(n, 1)
        if p.op.startswith('v_dot2') and vd & (set(c.uses) | set(c.defs)) and c.kind in ('valu', 'mfma', 'ds', 'vm'):
            same = c.op == p.op
            if not same: n = max(n, 3)
            else:
                srcab = set(c.uses) - set(c.defs)
                if vd & srcab: n = max(n, 3)
        if c.kind == 'vm' and sd & set(c.uses): n = max(n, 5)
        if c.kind == 'salu' and sd & set(c.uses): n = max(n, 1)
        if c.op.startswith('s_cbranch_vcc') and ('vcc', 0) in pd: n = max(n, 5)
    elif p.kind == 'salu':
        if ('m0', 0) in pd and c.kind == 'vm' and ('m0', 0) in c.uses: n = max(n, 1)
        if ('exec', 0) in pd and c.kind == 'valu' and '_dpp' in c.op: n = max(n, 1)
    elif p.kind == 'vm':
        if ('store' in p.op) and ('x4' in p.op or 'x3' in p.op):
            data = set(p.uses[:4]) if p.op.startswith('buffer') else set(p.uses)
            if data & set(c.defs): n = max(n, 2 if c.kind == 'valu' else 1)
    return n

class Asm:
    def __init__(self):
        self.ins = []
        self.vmq = []
        self.lgq = []
        self.smem = False
        self.tok = 0
        self.uid = 0
        self.nbytes_marks = []; self.nvm = 0
    def label_name(self, base):
        self.uid += 1
        return f'{base}_{self.uid}'
    def raw(self, txt):
        self.ins.append(I(txt))
    def _wait(self, vm=None, lg=None):
        parts = []
        if vm is not None:
            vm = min(vm, 63)
            if vm < len(self.vmq):
                parts.append(f'vmcnt({vm})'); self.vmq = self.vmq[len(self.vmq) - vm:] if vm else []
        if lg is not None:
            lg = min(lg, 15)
            if lg < len(self.lgq) or (self.smem and lg == 0):
                parts.append(f'lgkmcnt({lg})'); self.lgq = self.lgq[len(self.lgq) - lg:] if lg else []
                if lg == 0: self.smem = False
        if parts: self.raw('s_waitcnt ' + ' '.join(parts))
    def e(self, txt, only_wait=False):
        x = I(txt)
        touched = set(x.defs) | set(x.uses)
        vm = lg = None
        for k, (t, d) in enumerate(self.vmq):
            if d & touched: vm = len(self.vmq) - 1 - k
        for k, (t, d) in enumerate(self.lgq):
            if d & touched: lg = len(self.lgq) - 1 - k
        if self.smem and touched & self.smem_regs: lg = 0
        self._wait(vm, lg)
        if only_wait: return
        self.ins.append(x)
        self.tok += 1
        if x.kind == 'vm':
            self.nvm += 1
            self.vmq.append((self.tok, set(x.defs)))
        elif x.kind == 'ds':
            self.lgq.append((self.tok, set(x.defs)))
        elif x.kind == 'smem':
            if not self.smem: self.smem_regs = set()
            self.smem = True; self.smem_regs |= set(x.defs)
        return self.tok
    def __call__(self, txt):
        r = None
        for l in txt.strip().split('\n'):
            l = l.split(';')[0].strip()
            if l: r = self.e(l)
        return r
    def wait_vm(self, tok):
        for k, (t, d) in enumerate(self.vmq):
            if t == tok: self._wait(vm=len(self.vmq) - 1 - k); return
    def wait_lg(self, tok):
        for k, (t, d) in enumerate(self.lgq):
            if t == tok: self._wait(lg=len(self.lgq) - 1 - k); return
    def wait_all(self, vm=True, lg=True):
        self._wait(0 if vm else None, 0 if lg else None)
    def barrier(self, lg=True):
        if lg: self._wait(lg=0)
        self.raw('s_barrier')
    def touch(self, txt):
        t = self.e(txt); self.vmq[-1] = (t, set()); return t
    def label(self, name):
        self.raw(name + ':')
    def comment(self, c):
        x = I('s_nop 0'); x.txt = '; ' + c; x.kind = 'comment'; x.label = True; x.op = ';'
        self.ins.append(x)
    def snapshot(self): return (list(self.vmq), list(self.lgq), self.smem)
    def restore(self, s): self.vmq, self.lgq, self.smem = list(s[0]), list(s[1]), s[2]
    def text(self):
        out = []
        for x in self.ins:
            if not x.label:
                need = 0; dist = 0
                for p in reversed(out):
                    if dist >= 20: break
                    if not p.label:
                        g = need_gap(p, x)
                        need = max(need, g - dist)
                    dist += states(p)
                while need > 0:
                    k = min(need, 16)
                    out.append(I(f's_nop {k - 1}')); need -= k
            out.append(x)
        return '\n'.join(('' if x.label else '  ') + x.txt for x in out)

class Regs:
    def __init__(self, kind, n, first=0):
        self.kind, self.n = kind, n
        self.free = [True] * n
        for k in range(first): self.free[k] = False
        self.named = {}
        self.top = set()
        self.hi = first
    def alloc(self, name, cnt=1, align=None):
        if align is None: align = 1 if cnt == 1 else (2 if cnt < 4 else 4)
        rng = range(0, self.n - cnt + 1, align)
        if name in self.top: rng = reversed(rng)
        for s in rng:
            if all(self.free[s:s + cnt]):
                for k in range(s, s + cnt): self.free[k] = False
                self.named[name] = (s, cnt); self.hi = max(self.hi, s + cnt)
                return R(self.kind, s, cnt)
        raise RuntimeError(f'out of {self.kind} regs for {name} x{cnt}; live: {self.named}')
    def release(self, *rs):
        for r in rs:
            for k in range(r.s, r.s + r.n):
                assert not self.free[k], (r, k)
                self.free[k] = True
            for nm, (s, c) in list(self.named.items()):
                if s == r.s and c == r.n: del self.named[nm]

class R:
    def __init__(self, kind, s, n): self.kind, self.s, self.n = kind, s, n
    def __getitem__(self, k):
        if isinstance(k, slice):
            a = k.start or 0; b = self.n if k.stop is None else k.stop
            assert 0 <= a < b <= self.n, (a, b, self.n)
            return R(self.kind, self.s + a, b - a)
        assert 0 <= k < self.n, (k, self.n)
        return R(self.kind, self.s + k, 1)
    def __str__(self):
        return f'{self.kind}{self.s}' if self.n == 1 else f'{self.kind}[{self.s}:{self.s + self.n - 1}]'
    __repr__ = __str__
    def __format__(self, spec): return str(self)
```

```python
from util import *
def prologue(k):
    a, v, s = k.a, k.v, k.s
    a.label('KSTART')
    a('s_cmp_ge_u32 s2, 0x100')
    a.raw('s_cbranch_scc1 END')
    ka = s.alloc('ka', 16); kb = s.alloc('kb', 8); kc = s.alloc('kc', 4); kd = s.alloc('kd', 2)
    k.kc = kc
    a(f's_load_dwordx16 {ka}, s[0:1], 0\ns_load_dwordx8 {kb}, s[0:1], 64\ns_load_dwordx4 {kc}, s[0:1], 96\ns_load_dwordx2 {kd}, s[0:1], 112')
    if k.ts:
        k.tsr = s.alloc('ts', 2); k.vTS = v.alloc('vts'); k.T()
    k.sT = sT = s.alloc('sT', 6, 2)
    k.sI = sI = s.alloc('i'); k.sJ = sJ = s.alloc('j'); k.sW = sW = s.alloc('w'); k.sA = sA = s.alloc('a'); k.sB = sB = s.alloc('b')
    k.sY = sY = s.alloc('y')
    k.vL = vL = v.alloc('lane'); k.junk = junk = v.alloc('junk')
    t = v.alloc('pt', 8)
    a(f'''v_lshrrev_b32 {t[0]}, 6, v0
          v_and_b32 {vL}, 63, v0
          s_lshr_b32 {sY}, s2, 3
          v_readfirstlane_b32 {sW}, {t[0]}
          s_getpc_b64 {sT[2:4]}''')
    a.label('PCREF')
    a(f'''s_lshl_b32 {sT[0]}, {sY}, 3
          s_lshl_b32 {sT[1]}, {sW}, 1
          s_add_u32 {sT[0]}, {sT[0]}, {sT[1]}
          v_add_u32 {t[1]}, {sT[0]}, {vL}
          v_lshlrev_b32 {t[1]}, 7, {t[1]}
          v_min_u32 {t[1]}, END-PCREF, {t[1]}
          s_mov_b64 exec, 3''')
    a.touch(f'global_load_dword {junk}, {t[1]}, {sT[2:4]}')
    a(f'''s_mov_b64 exec, -1
          s_and_b32 {sT[0]}, s2, 7
          s_lshr_b32 {sT[1]}, s2, 6
          s_lshl_b32 {sT[4]}, {sT[0]}, 2
          s_add_u32 {sI}, {sT[4]}, {sT[1]}
          s_and_b32 {sJ}, {sY}, 7
          s_and_b32 {sA}, {sW}, 1
          s_lshr_b32 {sB}, {sW}, 1''')
    k.sRg = sRg = s.alloc('rg'); k.sRu = sRu = s.alloc('ru'); k.sNeg = sNeg = s.alloc('neg'); k.sMag = sMag = s.alloc('mag')
    sR0 = s.alloc('r0'); k.sD = sD = s.alloc('d')
    vTW = v.alloc('vTW'); vTU = v.alloc('vTU')
    a(f'''s_bfe_u32 {sNeg}, {sJ}, 0x10001
          s_lshr_b32 {sMag}, {sJ}, 2
          s_add_u32 {sMag}, {sMag}, 1
          s_sub_u32 {sT[1]}, 2, {sMag}
          s_cmp_eq_u32 {sNeg}, 1
          s_cselect_b32 {sRg}, {sMag}, {sT[1]}
          s_cselect_b32 {sRu}, 0, 2
          s_lshl_b32 {sR0}, {sI}, 6
          s_sub_u32 {sR0}, {sR0}, {sRu}
          s_lshl_b32 {sT[1]}, {sY}, 2
          s_add_u32 {sT[1]}, {sT[1]}, {sW}
          s_lshl_b32 {sT[4]}, {sT[1]}, 12
          v_lshl_add_u32 {vTW}, {vL}, 7, {sT[4]}
          s_lshl_b32 {sT[0]}, {sT[0]}, 18
          s_lshl_b32 {sT[1]}, {sT[1]}, 11
          s_add_u32 {sT[0]}, {sT[0]}, {sT[1]}
          v_lshl_add_u32 {vTU}, {vL}, 7, {sT[0]}
          s_lshl_b32 {sD}, {sJ}, 6
          s_lshl_b32 {sT[0]}, {sI}, 1
          s_add_u32 {sD}, {sD}, {sT[0]}
          s_add_u32 {sD}, {sD}, {sB}
          s_lshl_b32 {sT[0]}, {sD}, 8
          s_lshl_b32 {sT[1]}, {sA}, 7
          s_add_u32 {sT[0]}, {sT[0]}, {sT[1]}
          s_lshl_b32 {sT[1]}, {sD}, 1
          v_lshl_add_u32 {t[6]}, {vL}, 1, {sT[0]}
          v_mov_b32 {t[7]}, {sT[1]}''')
    vU = v.alloc('vU', 4); vUX = v.alloc('vUX')
    a(f'''v_lshrrev_b32 {t[0]}, 4, {vL}
          v_and_b32 {t[1]}, 15, {vL}
          v_xor_b32 {t[1]}, {t[1]}, {t[0]}
          v_lshlrev_b32 {t[1]}, 4, {t[1]}
          s_lshl_b32 {sT[0]}, {sW}, 4
          s_add_u32 {sT[0]}, {sT[0]}, {sR0}
          v_add_u32 {t[2]}, {sT[0]}, {t[0]}
          v_lshlrev_b32 {t[2]}, 10, {t[2]}
          v_add_u32 {vU[0]}, {t[2]}, {t[1]}''')
    for e in range(1, 4):
        a(f'v_xor_b32 {t[3]}, {64*e}, {t[1]}\nv_add_u32 {t[3]}, {3072*e}, {t[3]}\nv_add_u32 {vU[e]}, {t[2]}, {t[3]}')
    a(f'''s_add_u32 {sT[0]}, {sR0}, 64
          v_add_u32 {t[2]}, {sT[0]}, {t[0]}
          v_lshlrev_b32 {t[2]}, 10, {t[2]}
          s_lshl_b32 {sT[0]}, {sW}, 8
          v_add3_u32 {vUX}, {t[2]}, {t[1]}, {sT[0]}
          v_cmp_lt_u32 vcc, 31, {vL}
          v_mov_b32 {t[5]}, {hex(OOB)}
          s_mul_i32 {sT[0]}, {sW}, {UKC}
          s_add_u32 m0, {sT[0]}, 16384
          v_cndmask_b32 {vUX}, {vUX}, {t[5]}, vcc''')
    k.sW12 = sW12 = s.alloc('w12')
    a(f's_lshl_b32 {sW12}, {sW}, 12')
    if FINE: k.T()
    k.sU = k.srd('sU', ka[0:2], 2048 * 1024)
    k.sW1 = k.srd('sW1', kb[0:2], 512 * 1024)
    a('s_mov_b32 exec_lo, 0xffff\ns_mov_b32 exec_hi, 0')
    a.touch(f'buffer_load_dword {junk}, {vTU}, {k.sU}, 0 offen')
    a('s_mov_b32 exec_lo, -1')
    a.touch(f'buffer_load_dword {junk}, {vTW}, {k.sW1}, 0 offen')
    a('s_mov_b32 exec_hi, -1')
    a(f'buffer_load_dwordx4 {vUX}, {k.sU}, 0 offen lds')
    def udma(kc_):
        a(f's_add_u32 m0, {sW12}, {kc_*(UKC-256)}')
        for e in range(4): k.utok = a(f'buffer_load_dwordx4 {vU[e]}, {k.sU}, 0 offen offset:{1024*e+256*kc_} lds')
    udma(0)
    k.vPar = par = v.alloc('par', 8, 2)
    for q in range(4): a(f'global_load_ushort {par[q]}, {t[6]}, {ka[2+2*q:4+2*q]}')
    a(f'global_load_ushort {par[4]}, {t[7]}, {ka[10:12]}\nglobal_load_ushort {par[5]}, {t[7]}, {ka[12:14]}')
    a(f'v_xor_b32 {t[6]}, 0x80, {t[6]}')
    a(f'global_load_ushort {par[6]}, {t[6]}, {ka[6:8]}\nglobal_load_ushort {par[7]}, {t[6]}, {ka[8:10]}')
    udma(1)
    s.release(ka)
    k.T()
    k.sW2 = k.srd('sW2', kb[2:4], 512 * 1024)
    k.sW3 = k.srd('sW3', kb[4:6], 512 * 3584)
    k.sW4 = k.srd('sW4', kb[6:8], 1792 * 1024)
    k.sOut = k.srd('sOut', kc[0:2], 2048 * 1024)
    k.sWS = k.srd('sWS', kd, WS_SIZE)
    s.release(kb, kd, sR0)
    k.sNonce = s.alloc('nonce', 2); k.vNonce = v.alloc('vnonce', 2); k.vFlagOff = v.alloc('flagoff')
    skip = a.label_name('NN')
    a(f'''v_cmp_eq_u32 vcc, 0, v0
          v_mov_b32 {t[0]}, 0
          s_or_b32 {sT[0]}, s2, {sW}
          v_cndmask_b32 {k.vFlagOff}, {t[5]}, {t[0]}, vcc
          s_cmp_lg_u32 {sT[0]}, 0''')
    a.raw(f's_cbranch_scc1 {skip}')
    for x in L(f'''s_memrealtime {k.sNonce}
          s_waitcnt lgkmcnt(0)
          s_or_b32 {k.sNonce[0]}, {k.sNonce[0]}, 1
          v_mov_b32 {k.vNonce[0]}, {k.sNonce[0]}
          v_mov_b32 {k.vNonce[1]}, {k.sNonce[1]}
          s_mov_b64 exec, 1
          global_store_dwordx2 {t[0]}, {k.vNonce}, {kc[2:4]} sc1
          s_mov_b64 exec, -1'''): a.raw(x)
    a.label(skip)
    k.vWd = vWd = v.alloc('vWd', 4); k.vW3 = vW3 = v.alloc('vW3', 4); k.sWoff = sWoff = s.alloc('woff')
    a(f'''v_lshrrev_b32 {t[3]}, 3, {vL}
          v_and_b32 {t[4]}, 7, {vL}
          v_bfe_u32 {t[2]}, {vL}, 4, 1
          v_lshlrev_b32 {t[2]}, 2, {t[2]}
          v_xor_b32 {t[4]}, {t[4]}, {t[2]}
          v_lshlrev_b32 {t[4]}, 4, {t[4]}
          v_lshl_add_u32 {vWd[0]}, {t[3]}, 10, {t[4]}
          v_mul_u32_u24 {t[3]}, 3584, {t[3]}
          v_add_u32 {vW3[0]}, {t[3]}, {t[4]}
          s_cmp_eq_u32 {sW}, 3
          s_cselect_b32 {sT[2]}, 64, 128
          v_cmp_le_u32 vcc, {sT[2]}, {t[4]}
          s_lshl_b32 {sWoff}, {sW}, 15
          s_lshl_b32 {sT[0]}, {sJ}, 7
          s_add_u32 {sWoff}, {sWoff}, {sT[0]}
          v_cndmask_b32 {vW3[0]}, {vW3[0]}, {t[5]}, vcc''')
    for e in range(1, 4): a(f'v_add_u32 {vWd[e]}, {7168*e}, {vWd[0]}\nv_add_u32 {vW3[e]}, {(8*3584-1024)*e}, {vW3[0]}')
    k.vT = vT = v.alloc('vT', 4)
    a(f'''s_lshl_b32 {sT[0]}, {sY}, 2
          s_add_u32 {sT[0]}, {sT[0]}, {sW}
          s_lshl_b32 {sT[1]}, {sT[0]}, 13
          v_lshl_add_u32 {vT[0]}, {vL}, 7, {sT[1]}
          s_mul_i32 {sT[1]}, {sT[0]}, {48*128}
          s_add_u32 {sT[1]}, {sT[1]}, {8192*128}
          v_lshl_add_u32 {vT[1]}, {vL}, 7, {sT[1]}
          s_mul_i32 {sT[0]}, {sW}, {3584*128}
          s_lshl_b32 {sT[1]}, {sY}, 13
          s_add_u32 {sT[1]}, {sT[1]}, {sT[0]}
          v_lshl_add_u32 {vT[2]}, {vL}, 7, {sT[1]}
          s_mul_i32 {sT[1]}, {sY}, {48*128}
          s_add_u32 {sT[1]}, {sT[1]}, {sT[0]}
          s_add_u32 {sT[1]}, {sT[1]}, {2048*128}
          v_lshl_add_u32 {vT[3]}, {vL}, 7, {sT[1]}
          v_cmp_lt_u32 vcc, 47, {vL}
          v_cndmask_b32 {vT[1]}, {vT[1]}, {t[5]}, vcc
          v_cndmask_b32 {vT[3]}, {vT[3]}, {t[5]}, vcc
          v_cmp_lt_u32 vcc, 31, {vL}
          v_cndmask_b32 {vTW}, {vTW}, {t[5]}, vcc''')
    k.vB = vB = v.alloc('vB', 8); k.vAe = vAe = v.alloc('vAe'); k.vAo = vAo = v.alloc('vAo')
    k.vTr = vTr = v.alloc('vTrP'); k.B16 = B16 = v.alloc('B16', 4); k.vH = vH = v.alloc('h'); k.vTt = vTt = v.alloc('tt')
    k.vSW = vSW = v.alloc('vSW'); k.vSG = vSG = v.alloc('vSG'); k.vSU = vSU = v.alloc('vSU'); k.vUo = vUo = v.alloc('vUo', 4)
    a(f'''v_and_b32 {vTt}, 31, {vL}
          v_lshrrev_b32 {vH}, 5, {vL}
          s_lshl_b32 {sT[0]}, {sB}, 5
          s_add_u32 {sT[1]}, {sT[0]}, {sRg}
          v_add_u32 {t[0]}, {sT[1]}, {vTt}
          v_and_b32 {t[1]}, 15, {t[0]}
          v_xor_b32 {t[1]}, {t[1]}, {vH}
          s_lshl_b32 {sT[2]}, {sA}, 1
          v_xor_b32 {t[1]}, {sT[2]}, {t[1]}
          v_lshlrev_b32 {t[1]}, 4, {t[1]}
          v_lshl_add_u32 {vB[0]}, {t[0]}, 8, {t[1]}''')
    for q in range(1, 8): a(f'v_xor_b32 {vB[q]}, {32*q}, {vB[0]}')
    a(f'''v_lshlrev_b32 {vSG}, 5, {t[0]}
          v_add_u32 {vSG}, {L_STATP}, {vSG}
          v_add_u32 {t[2]}, {sT[2]}, {vH}
          v_lshl_add_u32 {vSW}, {t[2]}, 3, {vSG}
          s_add_u32 {sT[1]}, {sT[0]}, {sRu}
          v_add_u32 {t[0]}, {sT[1]}, {vTt}
          v_lshlrev_b32 {vSU}, 5, {t[0]}
          v_add_u32 {vSU}, {L_STATP}, {vSU}
          s_and_b32 {sT[1]}, {sJ}, 1
          s_lshl_b32 {sT[1]}, {sT[1]}, 3
          s_lshl_b32 {sT[3]}, {sA}, 2
          s_add_u32 {sT[1]}, {sT[1]}, {sT[3]}
          v_and_b32 {t[1]}, 15, {t[0]}
          v_xor_b32 {t[1]}, {sT[1]}, {t[1]}
          v_lshlrev_b32 {t[1]}, 4, {t[1]}
          v_lshl_add_u32 {t[1]}, {t[0]}, 8, {t[1]}
          v_lshl_add_u32 {t[1]}, {vH}, 3, {t[1]}
          s_lshr_b32 {sT[1]}, {sJ}, 1
          s_mul_i32 {sT[1]}, {sT[1]}, {UKC}
          v_add_u32 {vUo[0]}, {sT[1]}, {t[1]}
          v_xor_b32 {vUo[1]}, 16, {vUo[0]}
          v_xor_b32 {vUo[2]}, 32, {vUo[0]}
          v_xor_b32 {vUo[3]}, 48, {vUo[0]}''')
    k.vXW = vXW = v.alloc('vXW'); k.vXR = vXR = v.alloc('vXR'); k.vXT = vXT = v.alloc('vXT')
    a(f'''v_bfe_u32 {t[0]}, {vL}, 2, 2
          v_and_b32 {t[1]}, 3, {vL}
          v_bfe_u32 {t[2]}, {vL}, 4, 1
          v_lshlrev_b32 {t[1]}, 3, {t[1]}
          v_lshl_add_u32 {t[1]}, {t[2]}, 5, {t[1]}
          s_mul_i32 {sT[0]}, {sW}, 2560
          s_add_u32 {sT[0]}, {sT[0]}, {L_XS}
          v_lshl_add_u32 {t[3]}, {vH}, 3, {t[0]}
          v_mul_u32_u24 {t[3]}, 72, {t[3]}
          v_add3_u32 {vXR}, {t[3]}, {t[1]}, {sT[0]}
          v_mul_u32_u24 {t[3]}, 72, {vTt}
          v_lshl_add_u32 {t[3]}, {vH}, 3, {t[3]}
          v_add_u32 {vXW}, {sT[0]}, {t[3]}
          v_mul_u32_u24 {t[3]}, {XTS}, {vTt}
          v_lshl_add_u32 {vXT}, {vH}, 4, {t[3]}
          v_lshrrev_b32 {t[2]}, 1, {t[0]}
          v_lshl_add_u32 {t[1]}, {t[2]}, 6, {t[1]}
          v_lshl_add_u32 {t[1]}, {t[0]}, 7, {t[1]}
          v_lshl_add_u32 {vTr}, {vH}, 9, {t[1]}
          v_lshl_add_u32 {t[1]}, {vH}, 10, {t[1]}
          s_lshl_b32 {sT[1]}, {sA}, 6
          v_xor_b32 {t[1]}, {sT[1]}, {t[1]}
          s_lshl_b32 {sT[1]}, {sA}, 11
          s_add_u32 {sT[3]}, {sT[1]}, {L_W}
          s_sub_u32 {sT[1]}, {L_W}, {sT[1]}
          v_add_u32 {vAe}, {sT[3]}, {t[1]}
          v_add_u32 {vAo}, {sT[1]}, {t[1]}
          v_lshrrev_b32 {t[0]}, 3, {vL}
          v_lshrrev_b32 {t[1]}, 4, {vL}
          v_xor_b32 {t[0]}, {t[0]}, {t[1]}
          v_and_b32 {t[0]}, 1, {t[0]}
          v_cmp_eq_u32 vcc, 0, {t[0]}
          v_mov_b32 {t[2]}, 0x3f803f80''')
    for q in range(4): a(f'v_cndmask_b32 {B16[q]}, 0, {t[2]}, vcc')
    k.vXE = vXE = v.alloc('vXE', 2); k.vCW = vCW = v.alloc('vCW'); k.vCR = vCR = v.alloc('vCR'); k.vL16 = vL16 = v.alloc('l16')
    k.sXM = sXM = s.alloc('xm', 2); k.sHo = sHo = s.alloc('ho'); k.sXo = sXo = s.alloc('xo'); k.sFr = sFr = s.alloc('fr'); k.sFc = sFc = s.alloc('fc')
    a(f'''s_cmp_eq_u32 {sNeg}, 1
          s_cselect_b32 {sT[0]}, 0, 64
          s_cselect_b32 {sXM[0]}, 15, 31
          s_lshl_b32 {sXM[0]}, 1, {sXM[0]}
          s_cmp_eq_u32 {sMag}, 1
          s_cselect_b32 {sXM[0]}, {sXM[0]}, 0x80008000
          s_mov_b32 {sXM[1]}, 0
          v_and_b32 {t[0]}, 1, {t[1]}
          v_add_u32 {t[0]}, {sT[0]}, {t[0]}
          v_and_b32 {t[2]}, 15, {vL}
          v_lshlrev_b32 {t[2]}, 4, {t[2]}
          v_lshl_add_u32 {t[2]}, {t[0]}, 8, {t[2]}
          s_mul_i32 {sT[1]}, {sW}, {UKC}
          v_add_u32 {vXE[0]}, {sT[1]}, {t[2]}
          s_lshl_b32 {sT[1]}, {sW}, 3
          s_add_u32 {sT[1]}, {sT[1]}, {L_STATP}
          v_lshl_add_u32 {vXE[1]}, {t[0]}, 5, {sT[1]}
          v_bfe_u32 {t[0]}, {vL}, 3, 1
          v_lshlrev_b32 {t[2]}, 4, {t[1]}
          v_lshl_add_u32 {t[0]}, {t[0]}, 6, {t[2]}
          s_lshl_b32 {sT[0]}, {sW}, 8
          s_add_u32 {sT[0]}, {sT[0]}, {L_CSX}
          v_add_u32 {vCW}, {sT[0]}, {t[0]}
          v_lshl_add_u32 {vCR}, {vH}, 4, {sT[0]}
          v_lshlrev_b32 {vL16}, 4, {vL}
          s_lshl_b32 {sHo}, {sI}, 16
          s_lshl_b32 {sT[0]}, {sB}, 15
          s_add_u32 {sHo}, {sHo}, {sT[0]}
          s_lshl_b32 {sT[0]}, {sJ}, 12
          s_add_u32 {sHo}, {sHo}, {sT[0]}
          s_lshl_b32 {sT[0]}, {sA}, 11
          s_add_u32 {sHo}, {sHo}, {sT[0]}
          s_lshl_b32 {sXo}, {sJ}, 1
          s_add_u32 {sXo}, {sXo}, {sA}
          s_mul_i32 {sXo}, {sXo}, {32*XTS}
          s_lshl_b32 {sT[1]}, {sI}, 7
          s_add_u32 {sXo}, {sXo}, {sT[1]}
          s_lshl_b32 {sT[1]}, {sB}, 6
          s_add_u32 {sXo}, {sXo}, {sT[1]}
          s_add_u32 {sXo}, {sXo}, {WS_XT}
          s_lshl_b32 {sFr}, {sI}, 7
          s_add_u32 {sFr}, {sFr}, {WS_FLAG}
          s_lshl_b32 {sFc}, {sJ}, 8
          s_add_u32 {sFc}, {sFc}, {WS_FLAG + F1C}''')
    s.release(sRg, sRu, sNeg, sMag)
    k.sOnes = k.sconst('ones', '0x3f803f80'); k.sI512 = k.sconst('i512', fb(1.0 / 512)); k.sEps = k.sconst('eps', fb(1e-5))
    k.sC0 = k.sconst('c0', fb(-2.302208198)); k.sC1 = k.sconst('c1', fb(-0.1029432397)); k.sL2 = k.sconst('log2e', fb(1.4426950408889634))
    k.GA = GA = v.alloc('GA', 11, 1)
    sX = k.sconst('gx', hex((L_KT - 68096) & 0xffffffff))
    a(f'''v_lshlrev_b32 {t[0]}, 3, v0
          v_sub_u32 {t[0]}, 2047, {t[0]}
          v_cvt_f32_i32 {t[1]}, {t[0]}
          v_lshlrev_b32 {t[0]}, 2, {t[0]}
          v_add_u32 {t[0]}, {L_KT}, {t[0]}''')
    for q in range(0, 12, 2):
        a(f'v_add_f32 {t[2]}, {fb(-q)}, {t[1]}\nv_add_f32 {t[3]}, {fb(-q-1)}, {t[1]}')
        a(f'v_max_f32 {t[2]}, {fb(128.0)}, {t[2]}\nv_max_f32 {t[3]}, {fb(128.0)}, {t[3]}')
        a(f'v_cvt_pk_bf16_f32 {t[2]}, {t[2]}, {t[3]}')
        for z in range(2):
            if q + z > 10: continue
            a(f'v_mad_u32_u16 {t[4]}, {t[2]}, 4, {sX} op_sel:[{z},0,0,0]\nv_subrev_u32 {t[5]}, {4*(q+z)}, {t[0]}\nv_min_i32 {GA[q+z]}, {t[4]}, {t[5]}')
    s.release(sX)
    a(f'''v_mov_b32 {t[4]}, 0
          v_mov_b32 {t[5]}, 0
          v_mov_b32 {t[6]}, 0
          v_mov_b32 {t[7]}, 0
          v_mov_b32 {t[0]}, {L_UC}
          s_mov_b64 exec, 1
          ds_write_b128 {t[0]}, {t[4:8]}
          ds_write_b128 {t[0]}, {t[4:8]} offset:{KTS}
          s_mov_b64 exec, -1''')
    k.T()
    udma(2); udma(3)
    a.touch(f'buffer_load_dword {junk}, {vTW}, {k.sW2}, 0 offen')
    v.release(vU, vUX, vTU, vTW, t)

def p1(k):
    a, v, s = k.a, k.v, k.s
    vL, sT, sOnes = k.vL, k.sT, k.sOnes
    wt = {}
    WD = w_dma_items(k, k.sW1, wt)
    for x in WD[:10]: put(a, x)
    BK = v.alloc('BK', 64); SQ = v.alloc('SQ', 4); X = v.alloc('X', 4); k.U8 = U8 = v.alloc('U8', 8)
    a(f'v_mov_b32 {SQ[0]}, 0\nv_mov_b32 {SQ[1]}, 0\nv_mov_b32 {SQ[2]}, 0\nv_mov_b32 {SQ[3]}, 0')
    a.wait_vm(k.utok); a.barrier()
    k.T()
    rd = [f'ds_read_b128 {BK[4*q:4*q+4]}, {k.vB[(2*q)&7]} offset:{(q>>2)*UKC}' for q in range(16)]
    main = rd[:6] + [f'ds_read_b128 {X}, {k.vXE[0]}']
    for q in range(16):
        for d in range(4):
            main += [f'v_dot2c_f32_bf16 {SQ[0]}, {sOnes}, {BK[4*q+d]}', f'v_dot2c_f32_bf16 {SQ[1]}, {BK[4*q+d]}, {BK[4*q+d]}']
        if q + 6 < 16: main.append(rd[q + 6])
        if q == 10: main += [f'ds_read_b64 {U8[2*jj:2*jj+2]}, {k.vUo[jj]}' for jj in range(4)]
        if q == 3:
            for d in range(4): main += [f'v_dot2c_f32_bf16 {SQ[2]}, {sOnes}, {X[d]}', f'v_dot2c_f32_bf16 {SQ[3]}, {X[d]}, {X[d]}']
        if q in (5, 6, 7, 8):
            sh = 1 << (q - 5)
            main += [f'v_add_f32_dpp {SQ[z]}, {SQ[z]}, {SQ[z]} row_shr:{sh} row_mask:0xf bank_mask:0xf bound_ctrl:0' for z in (2, 3)]
    zero = v.alloc('zero')
    side = WD[10:] + [(lambda: a.touch(f'buffer_load_dword {k.junk}, {k.vT[0]}, {k.sW3}, 0 offen'), 8),
                      f'v_mov_b32 {zero}, 0', f'global_load_dwordx2 {k.vNonce}, {zero}, {k.kc[2:4]} sc1']
    weave(a, main, side, 11, 8)
    a(f's_mov_b64 exec, {k.sXM}\nds_write_b64 {k.vXE[1]}, {SQ[2:4]}\ns_mov_b64 exec, -1\nds_write_b64 {k.vSW}, {SQ[0:2]}')
    v.release(X, SQ, k.vXE, k.vSW, k.vUo); s.release(k.sXM)
    acc = v.alloc('acc1', 16); csa = v.alloc('csa', 4)
    DA = 6; Af = v.alloc('Af', 4 * DA); Bo = v.alloc('Bo', 12)
    a.wait_vm(wt[1]); a.barrier()
    k.T()
    tokA = {}
    def rdk(ks):
        q = ks % DA
        ad = k.vAo if ks & 1 else k.vAe
        if ks & 1: a(f'ds_read_b128 {Bo[4*((ks>>1)%3):4*((ks>>1)%3)+4]}, {k.vB[ks&7]} offset:{(ks>>3)*UKC}')
        a(f'ds_read_b64_tr_b16 {Af[4*q:4*q+2]}, {ad} offset:{ks*2048}')
        tokA[ks] = a(f'ds_read_b64_tr_b16 {Af[4*q+2:4*q+4]}, {ad} offset:{ks*2048+512}')
    sg = v.alloc('sg', 8); su = v.alloc('su', 8); k.XN = XN = v.alloc('acc', 16); xp = v.alloc('xp', 8)
    F = Fill(a)
    F.add([f'ds_read_b128 {sg[0:4]}, {k.vSG}', f'ds_read_b128 {sg[4:8]}, {k.vSG} offset:16', f'ds_read_b128 {su[0:4]}, {k.vSU}', f'ds_read_b128 {su[4:8]}, {k.vSU} offset:16'])
    F.add([f'v_lshlrev_b32 {XN[2*p]}, 16, {U8[p]}' for p in range(8)] + [f'v_and_b32 {XN[2*p+1]}, 0xffff0000, {U8[p]}' for p in range(8)])
    for x in (su, sg):
        F.add(L(f'''v_add_f32 {x[0]}, {x[0]}, {x[2]}
              v_add_f32 {x[1]}, {x[1]}, {x[3]}
              v_add_f32 {x[4]}, {x[4]}, {x[6]}
              v_add_f32 {x[5]}, {x[5]}, {x[7]}
              v_add_f32 {x[0]}, {x[0]}, {x[4]}
              v_add_f32 {x[1]}, {x[1]}, {x[5]}
              v_mul_f32 {x[0]}, {k.sI512}, {x[0]}
              v_mul_f32 {x[2]}, {x[0]}, {x[0]}
              v_fma_f32 {x[1]}, {x[1]}, {k.sI512}, -{x[2]}
              v_max_f32 {x[1]}, 0, {x[1]}
              v_add_f32 {x[2]}, {k.sEps}, {x[1]}
              v_rsq_f32 {x[2]}, {x[2]}'''))
    F.add(L(f'''v_mul_f32 {su[3]}, {su[0]}, {su[2]}
          v_mul_f32 {sg[3]}, {sg[2]}, {sg[2]}
          v_fma_f32 {sg[3]}, {sg[3]}, {sg[1]}, {k.sEps}
          v_rsq_f32 {sg[3]}, {sg[3]}
          v_sub_f32 {sg[0]}, 0, {sg[0]}
          v_mul_f32 {sg[2]}, {sg[2]}, {sg[3]}
          v_rcp_f32 {sg[1]}, {sg[2]}
          v_mul_f32 {sg[4]}, {k.sC0}, {sg[2]}
          v_mul_f32 {sg[5]}, {sg[2]}, {sg[2]}
          v_mul_f32 {sg[5]}, {sg[5]}, {sg[2]}
          v_mul_f32 {sg[5]}, {k.sC1}, {sg[5]}'''))
    F.add([f'v_fma_f32 {XN[p]}, {XN[p]}, {su[2]}, -{su[3]}' for p in range(16)])
    F.add([f'v_cvt_pk_bf16_f32 {xp[p]}, {XN[2*p]}, {XN[2*p+1]}' for p in range(8)])
    F.add([f'ds_write_b64 {k.vXW}, {xp[2*jj:2*jj+2]} offset:{16*jj}' for jj in range(4)])
    F.add([f'ds_read_b64_tr_b16 {xp[4*rho+2*io:4*rho+2*io+2]}, {k.vXR} offset:{72*(16*rho+4*io)}' for rho in range(2) for io in range(2)])
    for ks in range(DA - 1): rdk(ks)
    for ks in range(32):
        if ks == 16 - DA + 1:
            a.wait_vm(wt[3]); a.barrier(lg=False)
        if ks % 2 == 0: a.wait_lg(tokA[min(ks + 1, 31)])
        q = ks % DA
        B = Bo[4*((ks>>1)%3):4*((ks>>1)%3)+4] if ks & 1 else BK[2*ks:2*ks+4]
        a(f'v_mfma_f32_32x32x16_bf16 {acc}, {Af[4*q:4*q+4]}, {B}, {acc if ks else 0}')
        if ks + DA - 1 < 32: rdk(ks + DA - 1)
        F.gap(10)
        a(f'v_mfma_f32_16x16x32_bf16 {csa}, {Af[4*q:4*q+4]}, {k.B16}, {csa if ks else 0}')
        F.gap(8)
    F.flush()
    k.T()
    v.release(BK, Bo, k.vB, k.vAe, k.vAo, k.vSG, k.vSU, k.vXW, k.vXR)
    cs = v.alloc('cs', 16); hp = v.alloc('hp', 8)
    a(f's_mov_b32 exec_lo, 0x01010101\ns_mov_b32 exec_hi, 0x01010101\nds_write_b128 {k.vCW}, {csa}\ns_mov_b64 exec, -1')
    for jj in range(4): a(f'ds_read_b128 {cs[4*jj:4*jj+4]}, {k.vCR} offset:{32*jj}')
    ok = a.label_name('NK'); lp = a.label_name('NL')
    a(f'v_readfirstlane_b32 {k.sNonce[0]}, {k.vNonce[0]}\nv_readfirstlane_b32 {k.sNonce[1]}, {k.vNonce[1]}\ns_cmp_lg_u32 {k.sNonce[0]}, 0')
    a.raw(f's_cbranch_scc1 {ok}')
    a.raw(f's_mov_b32 {sT[0]}, 0')
    a.label(lp)
    for x in L(f'''global_load_dwordx2 {k.vNonce}, {zero}, {k.kc[2:4]} sc1
          s_add_u32 {sT[0]}, {sT[0]}, 1
          s_waitcnt vmcnt(0)
          v_readfirstlane_b32 {k.sNonce[0]}, {k.vNonce[0]}
          v_readfirstlane_b32 {k.sNonce[1]}, {k.vNonce[1]}
          s_cmp_gt_u32 {sT[0]}, 0x40000
          s_cbranch_scc1 {ok}
          s_cmp_eq_u32 {k.sNonce[0]}, 0
          s_cbranch_scc1 {lp}'''): a.raw(x)
    a.label(ok)
    ops = k.gelu_ops(acc, cs, (sg[0:2], 0), (sg[4:6], 0), (sg[4:6], 1), (sg[0:2], 1), hp, Af)
    h = len(ops) // 2
    for x in ops[:h]: a(x)
    a(f'buffer_store_dwordx4 {hp[0:4]}, {k.vL16}, {k.sWS}, {k.sHo} offen sc1')
    for x in ops[h:]: a(x)
    k.htok = a(f'buffer_store_dwordx4 {hp[4:8]}, {k.vL16}, {k.sWS}, {k.sHo} offen offset:1024 sc1')
    a(f'buffer_store_dwordx4 {xp[0:4]}, {k.vXT}, {k.sWS}, {k.sXo} offen sc1')
    k.xttok = a(f'buffer_store_dwordx4 {xp[4:8]}, {k.vXT}, {k.sWS}, {k.sXo} offen offset:32 sc1')
    a.barrier()
    k.T()
    v.release(acc, csa, Af, sg, su, xp, cs, hp, zero, k.vXT); s.release(k.sXo)

from phases_b import *
STEPS = [prologue, lambda k: None, p1, edge1, p2, edge2, p3, p4]
```

```python
from util import *

def edge1(k):
    a, v, s = k.a, k.v, k.s
    vL, sT, sA, sB, sW, sJ, sI = k.vL, k.sT, k.sA, k.sB, k.sW, k.sJ, k.sI
    par = k.vPar
    w2t = {}
    side = w_dma_items(k, k.sW2, w2t) + [(lambda: a.touch(f'buffer_load_dword {k.junk}, {k.vT[1]}, {k.sW3}, 0 offen'), 8)]
    t = v.alloc('t', 8); k.e1t = t
    z1 = v.alloc('z1', 2); z8 = v.alloc('z8', 2); z2 = v.alloc('z256', 2); z16 = v.alloc('z16', 2)
    g = v.alloc('g', 16); tm = v.alloc('tm', 4); e0 = v.alloc('e0', 2); e1 = v.alloc('e1', 2); pkr = v.alloc('pkr', 4, 1); vKW = v.alloc('vKW')
    k.sKinv = s.alloc('kinv')
    M = [f'v_lshlrev_b32 {par[q]}, 16, {par[q]}' for q in range(8)]
    M += L(f'''v_mul_f32 {t[0]}, {k.sL2}, {par[0]}
          v_mul_f32 {t[1]}, {k.sL2}, {par[4]}
          v_exp_f32 {t[0]}, {t[0]}
          v_exp_f32 {t[1]}, {t[1]}
          v_max3_f32 {t[3]}, |{par[2]}|, |{par[3]}|, |{par[6]}|
          v_cvt_pk_bf16_f32 {t[0]}, {t[0]}, {t[1]}
          v_max_f32 {t[3]}, |{par[7]}|, {t[3]}
          v_and_b32 {t[1]}, 0xffff0000, {t[0]}
          v_lshlrev_b32 {t[0]}, 16, {t[0]}
          v_mul_f32 {t[3]}, {t[3]}, {t[1]}
          v_mul_f32 {t[0]}, {t[0]}, {t[1]}
          v_mul_f32 {t[2]}, {par[1]}, {t[1]}
          v_max_f32_dpp {t[3]}, {t[3]}, {t[3]} row_shr:1 row_mask:0xf bank_mask:0xf
          v_mul_f32 {g[0]}, {par[2]}, {t[1]}
          v_mul_f32 {g[1]}, {par[3]}, {t[1]}
          v_max_f32_dpp {t[3]}, {t[3]}, {t[3]} row_shr:2 row_mask:0xf bank_mask:0xf
          v_mul_f32 {t[0]}, {fb(-1.4426950408889634)}, {t[0]}
          v_mul_f32 {t[2]}, 0.15915494, {t[2]}''')
    dpp = ['row_shr:4', 'row_shr:8', 'row_bcast:15', 'row_bcast:31']
    for z, p in ((z1, 1.0), (z8, 8.0), (z16, 16.0), (z2, 256.0)):
        sg = '-' if p in (8.0, 16.0) else ''
        M += L(f'''v_max_f32_dpp {t[3]}, {t[3]}, {t[3]} {dpp.pop(0)} row_mask:0xf bank_mask:0xf
              v_mul_f32 {t[4]}, {fb(p)}, {t[0]}
              v_mul_f32 {t[5]}, {fb(p)}, {t[2]}
              v_exp_f32 {t[4]}, {t[4]}
              v_fract_f32 {t[5]}, {t[5]}
              v_cos_f32 {z[0]}, {t[5]}
              v_sin_f32 {z[1]}, {t[5]}
              v_mul_f32 {z[0]}, {z[0]}, {t[4]}
              v_mul_f32 {z[1]}, {sg}{z[1]}, {t[4]}''')
    M += L(f'''v_readlane_b32 {sT[0]}, {t[3]}, 63
          s_mul_i32 {sT[2]}, {sB}, {KG_CH}
          s_lshl_b32 {sT[3]}, {sA}, 8
          s_add_u32 {sT[3]}, {sT[3]}, {sT[2]}
          v_lshl_add_u32 {vKW}, {vL}, 2, {sT[3]}
          s_lshr_b32 {sT[0]}, {sT[0]}, 23
          s_max_u32 {sT[0]}, {sT[0]}, 20
          s_min_u32 {sT[0]}, {sT[0]}, 240
          s_sub_u32 {sT[1]}, 264, {sT[0]}
          s_lshl_b32 {sT[1]}, {sT[1]}, 23
          s_sub_u32 {sT[0]}, {sT[0]}, 9
          s_lshl_b32 {k.sKinv}, {sT[0]}, 23
          v_mul_f32 {g[0]}, {sT[1]}, {g[0]}
          v_mul_f32 {g[1]}, {sT[1]}, {g[1]}''')
    G = lambda b: g[2 * b:2 * b + 2]
    npk = [0]
    def out(row, x):
        r = pkr[npk[0] % 4]; npk[0] += 1
        return [f'v_cvt_pk_f16_f32 {r}, {x[0]}, {x[1]}', f'ds_write_b32 {vKW}, {r} offset:{row * KG_R}']
    def cm(d, x, y, tt):
        return [f'v_pk_mul_f32 {tt}, {x}, {y} op_sel:[0,0] op_sel_hi:[0,1]', f'v_pk_fma_f32 {d}, {x}, {y}, {tt} op_sel:[1,1,0] op_sel_hi:[1,0,1] neg_lo:[1,0,0]']
    M += [f'v_mov_b32 {t[6]}, 0x3c00', f'ds_write_b32 {vKW}, {t[6]} offset:{21 * KG_R}'] + out(22, z8) + out(23, z16) + out(0, G(0))
    ech = []
    for c in range(3, 32):
        dst = e1 if c & 1 else e0
        src = (z8 if c == 3 else z16 if c == 4 else dst)
        ech.append(cm(dst, src, z16, tm[2:4]) + out(21 + c, dst))
    gch = [cm(G(b), G(b - 1), z1, tm[0:2]) + out(b, G(b)) for b in range(1, 8)]
    for m in range(1, 9):
        bs = (0, 2, 4, 6) if m == 1 else (0, 4) if m < 4 else (0,)
        for b in bs:
            row = 8 + b // 2 if m == 1 else 12 + 2 * (m - 2) + b // 4 if m < 4 else 12 + m
            gch.append(cm(G(b), G(b), z2, tm[0:2]) + out(row, G(b)))
    while ech or gch:
        x = ech.pop(0) if ech else []
        y = gch.pop(0) if gch else []
        M += [i_ for pr in zip(x, y) for i_ in pr] if x and y else x + y
    def flag1():
        a(f's_lshl_b32 {sT[4]}, {sJ}, 3\ns_add_u32 {sT[4]}, {sT[4]}, {k.sFr}')
        a.wait_vm(k.htok); a.barrier(lg=False); k.flag_store(sT[4])
        k.T()
    FP = int(os.environ.get('FP', 110))
    M.insert(FP, (flag1, 4))
    weave(a, M, side, 6, 2)
    v.release(z1, z8, z2, z16, g, tm, e0, e1, pkr, vKW, par[0:4], par[6:8])
    vG = v.alloc('vG'); vE = v.alloc('vE')
    a(f'''v_and_b32 {t[1]}, 15, {vL}
          v_lshrrev_b32 {t[2]}, 4, {vL}
          v_mul_u32_u24 {t[3]}, {KG_R}, {t[1]}
          v_lshl_add_u32 {t[3]}, {t[2]}, 4, {t[3]}
          v_add_u32 {vG}, {sT[2]}, {t[3]}
          s_mul_i32 {sT[0]}, {sA}, {16 * KG_R}
          v_add_u32 {vE}, {sT[0]}, {vG}
          s_lshl_b32 {sT[0]}, {sA}, 4
          v_add_u32 {t[1]}, {sT[0]}, {t[1]}
          s_mul_i32 {sT[1]}, {sB}, {KTS}
          s_add_u32 {sT[1]}, {sT[1]}, {L_KT}
          v_max_u32 {t[3]}, 1, {t[2]}
          v_sub_u32 {t[3]}, 6, {t[3]}
          v_lshlrev_b32 {t[3]}, {t[3]}, {t[1]}
          v_cmp_gt_u32 vcc, 32, {vL}
          v_lshlrev_b32 {t[4]}, 4, {t[2]}
          v_lshlrev_b32 {t[5]}, 9, {t[2]}
          v_cndmask_b32 {t[4]}, {t[5]}, {t[4]}, vcc
          v_add3_u32 {t[4]}, {t[4]}, {t[3]}, {sT[1]}
          v_lshl_add_u32 {t[6]}, {t[1]}, 2, {t[5]}
          v_add_u32 {t[6]}, {sT[1]}, {t[6]}
          v_cmp_gt_u32 vcc, 48, {vL}
          v_mov_b32 {t[5]}, 0x100
          s_lshl_b32 {sT[0]}, {sA}, 6
          v_cndmask_b32 {t[5]}, {t[5]}, 8, vcc
          v_add_u32 {t[5]}, {t[5]}, {t[4]}
          v_xor_b32 {t[0]}, {sT[0]}, {k.vTr}
          v_add_u32 {t[0]}, {L_W}, {t[0]}
          s_lshl_b32 {sT[4]}, {sI}, 3
          s_add_u32 {sT[4]}, {sT[4]}, {k.sFc}''')
    k.W2F = W2F = v.alloc('W2F', 128)
    Kf = v.alloc('Kf', 36); D = v.alloc('D', 8)
    a.wait_vm(w2t[3]); a.barrier()
    k.flag_store(sT[4])
    k.T()
    def krd(kk):
        o = 12 * (kk % 3)
        a(f'ds_read_b128 {Kf[o:o+4]}, {vE} offset:{21 * KG_R + 64 * kk}')
        for tau in range(2): a(f'ds_read_b128 {Kf[o+4+4*tau:o+8+4*tau]}, {vG} offset:{16 * tau * KG_R + 64 * kk}')
    w2 = deque()
    for ks in range(32):
        w2.append(f'ds_read_b64_tr_b16 {W2F[4*ks:4*ks+2]}, {t[0]} offset:{ks*2048}')
        w2.append(f'ds_read_b64_tr_b16 {W2F[4*ks+2:4*ks+4]}, {t[0]} offset:{ks*2048+1024}')
    for kk in range(3): krd(kk)
    for kk in range(8):
        o = 12 * (kk % 3)
        for tau in range(2):
            d = D[4*tau:4*tau+4]
            a(f'v_mfma_f32_16x16x32_f16 {d}, {Kf[o+4+4*tau:o+8+4*tau]}, {Kf[o:o+4]}, {d if kk else 0}')
        if kk + 3 < 8: krd(kk + 3)
        for _ in range(2): a(w2.popleft())
    k.vP8 = v.alloc('vP8'); k.vP32 = v.alloc('vP32')
    a(f'v_min_u32 {k.vP8}, 7, {vL}\nv_lshlrev_b32 {k.vP8}, 3, {k.vP8}\nv_lshlrev_b32 {k.vP32}, 3, {k.vTt}')
    for _ in range(8): a(w2.popleft())
    for q in range(8): a(f'v_mul_f32 {D[q]}, {k.sKinv}, {D[q]}')
    a(f'ds_write_b64 {t[4]}, {D[0:2]}\nds_write_b64 {t[5]}, {D[2:4]}\ns_mov_b32 exec_hi, 0')
    for r in range(4): a(f'ds_write_b32 {t[6]}, {D[4+r]} offset:{2048+128*r}')
    a('s_mov_b32 exec_hi, -1')
    if os.environ.get('PEARLY', '1') == '1': k.p1r = k.poll_issue(k.vP8, k.sFr)
    while w2: a(w2.popleft())
    v.release(Kf, D, vG, vE); s.release(k.sKinv)
    k.w3 = w3 = Stream(k, k.sW3, k.vW3, 16, 3, 3584, lambda q, ph: AG(128 * ph + 4 * q, 4))
    a(f'''s_mul_i32 {w3.sM}, {sW}, 12288
          s_add_u32 {w3.sM}, {w3.sM}, {L_STG}
          s_mul_i32 {w3.sO}, {sJ}, 448
          s_lshl_b32 {sT[0]}, {sW}, 7
          s_add_u32 {w3.sO}, {w3.sO}, {sT[0]}
          s_sub_u32 {w3.sO}, {w3.sO}, {32 * 3584}
          v_add_u32 {w3.vA[0]}, {w3.sM}, {k.vTr}
          v_xor_b32 {w3.vA[1]}, 64, {w3.vA[0]}
          s_lshl_b32 {sT[1]}, {sB}, 15
          s_lshl_b32 {sT[2]}, {sA}, 12
          s_add_u32 {sT[1]}, {sT[1]}, {sT[2]}
          s_lshl_b32 {sT[2]}, {sI}, 16
          s_add_u32 {sT[2]}, {sT[2]}, {sT[1]}
          s_lshl_b32 {sT[3]}, {sB}, 15
          v_add_u32 {t[1]}, {sT[3]}, {k.vL16}
          v_lshlrev_b32 {t[0]}, 4, v0
          v_add_u32 {t[0]}, {L_CP}, {t[0]}''')
    k.cs3a = v.alloc('cs3a', 8); k.ncs3 = 0
    a.barrier()
    k.T()

def p2(k):
    a, v, s = k.a, k.v, k.s
    vL, sT, sA, sB, sW, sJ, sI = k.vL, k.sT, k.sA, k.sB, k.sW, k.sJ, k.sI
    t = k.e1t; w3 = k.w3
    if not hasattr(k, 'p1r'): k.p1r = k.poll_issue(k.vP8, k.sFr)
    V = v.alloc('V', 22, 1); P = v.alloc('P', 8)
    for ch in range(2):
        for q in range(11): a(f'ds_read_b32 {V[11*ch+q]}, {k.GA[q]} offset:{ch * KTS}')
    k.poll_check(k.p1r)
    k.T()
    toks = {}
    side = []
    for c in range(4):
        side.append((lambda c=c: a(f's_add_u32 m0, {sT[1]}, {c * 8192}\ns_add_u32 {sT[3]}, {sT[2]}, {WS_H + c * 8192}'), 8))
        for e in range(4):
            def f(c=c, e=e): toks[c] = a(f'buffer_load_dwordx4 {k.vL16}, {k.sWS}, {sT[3]} offen offset:{1024*e} lds')
            side.append((f, 8))
    for x in side[:10]: put(a, x)
    main = []
    for ch in range(2):
        for mu in range(4):
            p = P[4*(mu&1):4*(mu&1)+4]
            main += [f'v_cvt_pk_bf16_f32 {p[q]}, {V[11*ch+3-mu+2*q]}, {V[11*ch+4-mu+2*q]}' for q in range(4)]
            main.append(f'ds_write_b128 {t[0]}, {p} offset:{ch*4*CS + mu*CS}')
    weave(a, main, side[10:], 4)
    v.release(V, P, k.GA)
    pc = k.poll_issue(k.vP32, k.sFc)
    side = w3.fill_items() + w3.fill_items() + w3.fill_items() + [(lambda: a.touch(f'buffer_load_dword {k.junk}, {k.vT[2]}, {k.sW4}, 0 offen'), 8)]
    k.cA = vA = v.alloc('cA'); k.cB = vB = v.alloc('cB'); k.cS = cS = v.alloc('cS'); vSt = v.alloc('vSt'); sSt = s.alloc('sSt'); sUC = s.alloc('sUC', 2)
    main = L(f'''v_lshrrev_b32 {t[2]}, 1, {vL}
          v_mul_u32_u24 {t[2]}, {CS}, {t[2]}
          v_and_b32 {t[3]}, 1, {vL}
          v_lshl_add_u32 {t[2]}, {t[3]}, 4, {t[2]}
          v_add_u32 {t[2]}, {L_CP + 4096}, {t[2]}
          v_mov_b32 {t[4]}, 0
          v_mov_b32 {t[5]}, 0
          v_mov_b32 {t[6]}, 0
          v_mov_b32 {t[7]}, 0''')
    main.append((lambda: a(f's_mov_b64 exec, 0xffff\nds_write_b128 {t[2]}, {t[4:8]}\ns_mov_b64 exec, -1'), 12))
    main += L(f'''v_and_b32 {t[0]}, 3, {vL}
          v_mul_u32_u24 {t[0]}, {CS}, {t[0]}
          v_bfe_u32 {t[3]}, {vL}, 2, 2
          v_lshlrev_b32 {t[3]}, 3, {t[3]}
          v_sub_u32 {t[0]}, {t[0]}, {t[3]}
          v_lshrrev_b32 {t[2]}, 4, {vL}
          v_lshl_add_u32 {t[0]}, {t[2]}, 4, {t[0]}
          s_mul_i32 {sT[0]}, {sB}, {4 * CS}
          s_add_u32 {sT[0]}, {sT[0]}, {L_CP + 24}
          v_add_u32 {vA}, {sT[0]}, {t[0]}
          v_and_b32 {t[3]}, 15, {vL}
          v_lshlrev_b32 {t[3]}, 5, {t[3]}
          v_lshl_add_u32 {t[0]}, {t[2]}, 4, {t[3]}
          s_mul_i32 {sT[0]}, {sB}, {UCS}
          s_lshl_b32 {sT[4]}, {sA}, 9
          s_sub_u32 {sT[0]}, {sT[0]}, {sT[4]}
          s_add_u32 {sT[0]}, {sT[0]}, {L_UC + UCP - 480}
          v_add_u32 {vB}, {sT[0]}, {t[0]}
          v_lshl_add_u32 {cS}, {t[2]}, 3, {t[3]}
          v_lshlrev_b32 {vSt}, 3, {k.vTt}
          v_lshl_add_u32 {vSt}, {k.vH}, 8, {vSt}
          s_lshl_b32 {sSt}, {sI}, 13
          s_lshl_b32 {sT[0]}, {sJ}, 10
          s_add_u32 {sSt}, {sSt}, {sT[0]}
          s_lshl_b32 {sT[0]}, {sA}, 9
          s_add_u32 {sSt}, {sSt}, {sT[0]}
          s_lshl_b32 {sT[0]}, {sB}, 2
          s_add_u32 {sSt}, {sSt}, {sT[0]}
          s_add_u32 {sSt}, {sSt}, {WS_STAT}
          s_mul_i32 {sUC[0]}, {k.sD}, {XTS}
          s_lshl_b32 {sT[0]}, {sA}, 11
          s_add_u32 {sUC[0]}, {sUC[0]}, {sT[0]}
          s_add_u32 {sUC[0]}, {sUC[0]}, {WS_XT}
          s_mul_i32 {sUC[1]}, {sB}, {UCS}
          s_add_u32 {sUC[1]}, {sUC[1]}, {sT[0]}
          v_add_u32 {t[2]}, {L_UC}, {k.vL16}
          s_add_u32 {sT[3]}, {k.sHo}, {WS_X1}
          s_lshl_b32 {sT[4]}, {sJ}, 3
          s_add_u32 {sT[4]}, {sT[4]}, {k.sFr}
          s_add_u32 {sT[4]}, {sT[4]}, {F2}''')
    weave(a, main, side, 3)
    NB = 5
    Bf = v.alloc('Bf', 4 * NB)
    X = k.XN
    tok = {}
    def rd(ks): tok[ks] = a(f'ds_read_b128 {Bf[4*(ks%NB):4*(ks%NB)+4]}, {t[1]} offset:{ks*1024}')
    F = Fill(a)
    a.wait_vm(toks[0]); a.barrier()
    k.T()
    F.add([(lambda: a(f's_mov_b32 exec_hi, 0x3fffffff\nds_write_b128 {t[2]}, {t[4:8]}\nds_write_b128 {t[2]}, {t[4:8]} offset:{UCS}\ns_mov_b32 exec_hi, -1'), 16)])
    for ks in range(NB - 1): rd(ks)
    for ks in range(32):
        nx = ks + NB - 1
        if nx < 32 and nx % 8 == 0: a.wait_vm(toks[nx // 8]); a.barrier(lg=False)
        if ks % 2 == 0: a.wait_lg(tok[ks + 1])
        a(f'v_mfma_f32_32x32x16_bf16 {X}, {k.W2F[4*ks:4*ks+4]}, {Bf[4*(ks%NB):4*(ks%NB)+4]}, {X}')
        if nx < 32: rd(nx)
        if ks == 21: F.add(w3.cons_items() + w3.cons_items() + w3.fill_items())
        F.gap(16)
    v.release(k.W2F, Bf)
    F.flush()
    k.T()
    xp = v.alloc('xp', 8); SQ = v.alloc('SQ', 2)
    a(f'v_mov_b32 {SQ[0]}, 0\nv_mov_b32 {SQ[1]}, 0')
    for q in range(4): a(f'v_cvt_pk_bf16_f32 {xp[q]}, {X[2*q]}, {X[2*q+1]}')
    a(f'buffer_store_dwordx4 {xp[0:4]}, {k.vL16}, {k.sWS}, {sT[3]} offen sc1')
    for q in range(4, 8): a(f'v_cvt_pk_bf16_f32 {xp[q]}, {X[2*q]}, {X[2*q+1]}')
    a(f'buffer_store_dwordx4 {xp[4:8]}, {k.vL16}, {k.sWS}, {sT[3]} offen offset:1024 sc1')
    for q in range(8): a(f'v_dot2c_f32_bf16 {SQ[0]}, {k.sOnes}, {xp[q]}\nv_dot2c_f32_bf16 {SQ[1]}, {xp[q]}, {xp[q]}')
    a(f'v_permlane32_swap_b32 {SQ[0]}, {SQ[1]}\nv_add_f32 {SQ[0]}, {SQ[0]}, {SQ[1]}')
    tk = a(f'buffer_store_dword {SQ[0]}, {vSt}, {k.sWS}, {sSt} offen sc1')
    k.poll_check(pc)
    a(f's_add_u32 m0, {sUC[1]}, {L_UC + UCP}\ns_nop 0')
    a(f'buffer_load_dwordx4 {k.vL16}, {k.sWS}, {sUC[0]} offen lds')
    uct = a(f'buffer_load_dwordx4 {k.vL16}, {k.sWS}, {sUC[0]} offen offset:1024 lds')
    weave(a, w3.fill_items() + w3.cons_items() + w3.fill_items(), cs3_items(k, 4), 2)
    a.touch(f'buffer_load_dword {k.junk}, {k.vT[3]}, {k.sW4}, 0 offen')
    for x in cs3_items(k, 6): a(x)
    a.wait_vm(uct)
    a.barrier()
    k.flag_store(sT[4])
    k.T()
    v.release(xp, SQ, vSt, k.vT); s.release(sSt, sUC)

def edge2(k):
    a, v, s = k.a, k.v, k.s
    vL, sT, sA, sB, sW, sJ, sI = k.vL, k.sT, k.sA, k.sB, k.sW, k.sJ, k.sI
    t = k.e1t; w3 = k.w3; vA, vB, cS = k.cA, k.cB, k.cS
    Y = v.alloc('Y', 16); Af = v.alloc('cAf', 64); Bf = v.alloc('cBf', 64)
    def loads(rho):
        bu = rho & 1; r = 32 * rho; O = []
        for i in range(8):
            O.append(f'ds_read_b128 {Bf[32*bu+4*i:32*bu+4*i+4]}, {vB} offset:{2 * (256 * i + 224 - r)}')
            d = Af[32*bu+4*i:32*bu+4*i+4]; o = 2 * (2016 - 256 * i - r)
            O += [f'ds_read_b64 {d[0:2]}, {vA} offset:{o}', f'ds_read_b64 {d[2:4]}, {vA} offset:{o + 8}']
        return O
    for x in loads(0): a(x)
    first = set()
    NS = int(os.environ.get('NS', 8))
    for rho in range(8):
        bu = rho & 1
        nxt = deque(loads(rho + 1) if rho < 7 else [])
        st = deque()
        if rho < NS and w3.nc < 16:
            st.extend(w3.cons_items())
            if w3.nf < 16: st.extend(w3.fill_items())
        mm = sorted([(i, nt) for nt in (1, 3, 5, 7) for i in range(nt + 1)], key=lambda x: (max(x[0], x[1] - x[0]), x[1]))
        for n_, (i, nt) in enumerate(mm):
            y = Y[4*(nt>>1):4*(nt>>1)+4]; de = nt - i
            a(f'v_mfma_f32_16x16x32_bf16 {y}, {Af[32*bu+4*i:32*bu+4*i+4]}, {Bf[32*bu+4*de:32*bu+4*de+4]}, {y if nt in first else 0}')
            first.add(nt)
            if n_ < 12:
                for _ in range(2):
                    if nxt: a(nxt.popleft())
            else:
                for _ in range(2):
                    if st: put(a, st.popleft())
        assert not nxt and not st
    v.release(Af, Bf)
    k.T()
    a(f's_add_u32 {sT[4]}, {k.sFr}, {F2}')
    k.p2r = k.poll_issue(k.vP8, sT[4])
    xu = v.alloc('xu', 8); w = v.alloc('w', 16)
    a(f'''s_mul_i32 {sT[0]}, {sB}, {UCS}
          s_lshl_b32 {sT[1]}, {sA}, 9
          s_sub_u32 {sT[0]}, {sT[0]}, {sT[1]}
          s_add_u32 {sT[0]}, {sT[0]}, {L_UC + UCP}
          v_add_u32 {t[0]}, {sT[0]}, {cS}''')
    for q in range(4): a(f'ds_read_b64 {xu[2*q:2*q+2]}, {t[0]} offset:{512 * (2*q+1)}')
    a(f'''s_mul_i32 {sT[0]}, {k.sD}, {XTS}
          s_sub_u32 {sT[0]}, {sT[0]}, {sT[1]}
          s_add_u32 {sT[0]}, {sT[0]}, {WS_ST}
          s_lshl_b32 {sT[2]}, {sI}, 16
          s_add_u32 {sT[2]}, {sT[2]}, {k.sW12}''')
    for q in range(8): a(f'v_lshlrev_b32 {w[2*q]}, 16, {xu[q]}\nv_and_b32 {w[2*q+1]}, 0xffff0000, {xu[q]}')
    for q in range(8): a(f'v_pk_fma_f32 {Y[2*q:2*q+2]}, {w[2*q:2*q+2]}, {k.vPar[4:6]}, {Y[2*q:2*q+2]} op_sel:[0,1,0] op_sel_hi:[1,1,1]')
    for q in range(8): a(f'v_cvt_pk_bf16_f32 {xu[q]}, {Y[2*q]}, {Y[2*q+1]}')
    for q in range(4): k.sttok = a(f'buffer_store_dwordx2 {xu[2*q:2*q+2]}, {cS}, {k.sWS}, {sT[0]} offen offset:{512 * (2*q+1)} sc1')
    v.release(Y, xu, w, vA, vB, cS, k.vPar[4:6])

def p3(k):
    a, v, s = k.a, k.v, k.s
    vL, sT, sA, sB, sW, sJ, sI = k.vL, k.sT, k.sA, k.sB, k.sW, k.sJ, k.sI
    t = k.e1t; w3 = k.w3
    k.poll_check(k.p2r)
    k.T()
    toks = {}
    side = []
    for c in range(4):
        side.append((lambda c=c: a(f's_add_u32 m0, {k.sW12}, {c * 16384}\ns_add_u32 {sT[3]}, {sT[2]}, {WS_X1 + c * 16384}'), 8))
        for e in range(4):
            def f(c=c, e=e): toks[c] = a(f'buffer_load_dwordx4 {k.vL16}, {k.sWS}, {sT[3]} offen offset:{1024*e} lds')
            side.append((f, 8))
    for x in side[:10]: put(a, x)
    main = []
    while w3.nc < 16:
        main += w3.cons_items()
        if w3.nf < 16: main += w3.fill_items()
        main += cs3_items(k, 2 * w3.nc - 4)
    grp = [side[10:15], side[15:20]]
    n3 = len(main) // 3
    hd = [i_ for i_, x in enumerate(main) if isinstance(x, str) or x[1] == 4]
    cut1 = min(i_ for i_ in hd if i_ >= 8) if main else 0
    for x in main[:cut1]: put(a, x)
    for x in grp[0] + grp[1]: put(a, x)
    for x in main[cut1:]: put(a, x)
    for x in cs3_items(k, 32): a(x)
    w3.free(); v.release(k.vW3)
    k.w4 = w4 = Stream(k, k.sW4, k.vWd, 14, 5, 1024, lambda q, ph: AG(8 * q + 4 * ph, 4))
    sH3 = s.alloc('h3o'); vS1 = v.alloc('vS1'); sS2 = s.alloc('sS2', 2)
    AC = v.alloc('AC', 8); BM = v.alloc('BM', 8)
    a(f'''s_mov_b32 exec_lo, 0x01010101
          s_mov_b32 exec_hi, 0x01010101
          ds_write_b128 {k.vCW}, {k.cs3a[0:4]}
          ds_write_b128 {k.vCW}, {k.cs3a[4:8]} offset:128
          s_mov_b64 exec, -1
          s_lshl_b32 {sT[0]}, {sW}, 8
          s_add_u32 {sT[0]}, {sT[0]}, {L_CSX}
          v_lshl_add_u32 {t[1]}, {k.vTt}, 2, {sT[0]}
          ds_read_b32 {t[2]}, {t[1]}
          ds_read_b32 {t[3]}, {t[1]} offset:128
          s_mul_i32 {w4.sM}, {sW}, 20480
          s_add_u32 {w4.sM}, {w4.sM}, {L_W4}
          s_mul_i32 {w4.sO}, {sW}, {448 * 1024}
          s_lshl_b32 {sT[0]}, {sJ}, 7
          s_add_u32 {w4.sO}, {w4.sO}, {sT[0]}
          s_sub_u32 {w4.sO}, {w4.sO}, {32 * 1024}
          s_lshl_b32 {sT[0]}, {sA}, 6
          v_xor_b32 {k.vTr}, {sT[0]}, {k.vTr}
          v_add_u32 {w4.vA[0]}, {w4.sM}, {k.vTr}
          v_xor_b32 {w4.vA[1]}, 64, {w4.vA[0]}
          s_mul_i32 {sH3}, {sI}, 229376
          s_mul_i32 {sT[0]}, {sJ}, 14336
          s_add_u32 {sH3}, {sH3}, {sT[0]}
          s_add_u32 {sH3}, {sH3}, {k.sW12}
          s_add_u32 {sH3}, {sH3}, {WS_H3}
          s_cmp_eq_u32 {sW}, 3
          s_cselect_b32 {sT[0]}, {hex(OOB)}, 0
          v_or_b32 {vS1}, {sT[0]}, {k.vL16}
          v_lshlrev_b32 {t[0]}, 3, {k.vTt}
          v_lshl_add_u32 {t[0]}, {k.vH}, 8, {t[0]}
          v_add_u32 {t[0]}, {L_ST2}, {t[0]}
          s_lshl_b32 {sS2[0]}, {sW}, 11
          s_lshl_b32 {sS2[1]}, {sI}, 13
          s_add_u32 {sS2[1]}, {sS2[1]}, {sS2[0]}
          s_add_u32 {sS2[1]}, {sS2[1]}, {WS_STAT}
          s_lshl_b32 {sT[5]}, {sI}, 3
          s_add_u32 {sT[5]}, {sT[5]}, {k.sFc}
          s_add_u32 {sT[5]}, {sT[5]}, {FC - F1C}''')
    for ph in range(2):
        c_ = t[2 + ph]; A_ = AC[4*ph:4*ph+4]
        a(f'''v_cvt_pk_bf16_f32 {A_[0]}, {c_}, {c_}
              v_mov_b32 {A_[2]}, 0
              v_and_b32 {t[4]}, 0xffff0000, {A_[0]}
              v_mov_b32 {A_[3]}, 0
              v_sub_f32 {t[4]}, {c_}, {t[4]}
              v_mov_b32 {BM[4*ph+2]}, 0
              v_cvt_pk_bf16_f32 {A_[1]}, {t[4]}, 0
              v_mov_b32 {BM[4*ph+3]}, 0''')
    v.release(k.cs3a, k.vCW, k.vCR, k.B16)
    NB = 8
    acc = [v.alloc('acc0', 16), v.alloc('acc1', 16)]
    Bf = v.alloc('Bf', 4 * NB); tmp = v.alloc('tmp', 8); hp = v.alloc('hp', 8)
    st = v.alloc('st', 32); cI = v.alloc('cI', 2); c0 = v.alloc('c0', 2); c1 = v.alloc('c1', 2); cL = v.alloc('cL', 2)
    a.wait_vm(toks[0]); a.barrier()
    k.flag_store(sT[5])
    k.T()
    stoks = {}
    def sdma():
        a(f's_add_u32 m0, {sS2[0]}, {L_ST2}\ns_nop 0')
        a(f'buffer_load_dwordx4 {k.vL16}, {k.sWS}, {sS2[1]} offen lds')
        stoks[0] = a(f'buffer_load_dwordx4 {k.vL16}, {k.sWS}, {sS2[1]} offen offset:1024 lds')
    sdma()
    def stats_ops():
        O = [f'ds_read_b64 {st[2*q:2*q+2]}, {t[0]} offset:{512*q}' for q in range(16)]
        n = 32
        while n > 2:
            O += [f'v_add_f32 {st[q]}, {st[q]}, {st[q+n//2]}' for q in range(n // 2)]
            n //= 2
        S, Q = st[0:2], st[2:4]
        O += [f'v_mov_b32 {Q[0]}, {S[0]}', f'v_mov_b32 {Q[1]}, {S[1]}', f'v_cmp_gt_u32 vcc, 32, {vL}',
              f'v_permlane32_swap_b32 {S[0]}, {Q[0]}', f'v_permlane32_swap_b32 {S[1]}, {Q[1]}']
        P_ = []
        for b in range(2):
            B_ = BM[4*b:4*b+4]
            P_.append(L(f'''v_mul_f32 {S[b]}, {k.sI512}, {S[b]}
                  v_mul_f32 {st[4+b]}, {S[b]}, {S[b]}
                  v_fma_f32 {Q[b]}, {Q[b]}, {k.sI512}, -{st[4+b]}
                  v_cndmask_b32 {S[b]}, 0, -{S[b]}, vcc
                  v_max_f32 {Q[b]}, 0, {Q[b]}
                  v_cvt_pk_bf16_f32 {B_[1]}, {S[b]}, 0
                  v_add_f32 {Q[b]}, {k.sEps}, {Q[b]}
                  v_lshlrev_b32 {st[8+b]}, 16, {B_[1]}
                  v_rsq_f32 {st[4+b]}, {Q[b]}
                  v_sub_f32 {st[8+b]}, {S[b]}, {st[8+b]}
                  v_log_f32 {cL[b]}, {Q[b]}
                  v_cvt_pk_bf16_f32 {B_[0]}, {S[b]}, {st[8+b]}
                  v_mul_f32 {cI[b]}, {Q[b]}, {st[4+b]}
                  v_mul_f32 {c0[b]}, {k.sC0}, {st[4+b]}
                  v_mul_f32 {st[6+b]}, {st[4+b]}, {st[4+b]}
                  v_mul_f32 {cL[b]}, 0.5, {cL[b]}
                  v_mul_f32 {st[6+b]}, {st[6+b]}, {st[4+b]}
                  v_mul_f32 {c1[b]}, {k.sC1}, {st[6+b]}'''))
        return O + [x for pr in zip(*P_) for x in pr]
    htok = {}
    def store(ps, hf):
        ph, tb = ps >> 1, ps & 1
        def f(): htok[0] = a(f'buffer_store_dwordx4 {hp[4*hf:4*hf+4]}, {vS1 if ph else k.vL16}, {k.sWS}, {sT[3]} offen offset:{2048*ph+1024*hf} sc1')
        return ([f's_add_u32 {sT[3]}, {sH3}, {tb * 114688}'] if hf == 0 else []) + [(f, 8)]
    def epi_ops(ps):
        tb = ps & 1; x = acc[ps & 1]; O = []
        for g in range(4):
            E = range(4*g, 4*g+4); w = lambda e: tmp[e & 7]
            O += [f'v_mul_f32 {w(e)}, {x[e]}, {x[e]}' for e in E]
            O += [f'v_fma_f32 {w(e)}, {w(e)}, {c1[tb]}, {c0[tb]}' for e in E]
            O += [f'v_fma_f32 {w(e)}, {w(e)}, {x[e]}, {cL[tb]}' for e in E]
            O += [f'v_exp_f32 {w(e)}, {w(e)}' for e in E]
            O += [f'v_add_f32 {w(e)}, {w(e)}, {cI[tb]}' for e in E]
            O += [f'v_rcp_f32 {w(e)}, {w(e)}' for e in E]
            O += [f'v_mul_f32 {w(e)}, {w(e)}, {x[e]}' for e in E]
            O += [f'v_cvt_pk_bf16_f32 {hp[e//2]}, {w(e)}, {w(e+1)}' for e in E[::2]]
            if g & 1: O += store(ps, g >> 1)
        return O
    def epi_pk(ps):
        tb = ps & 1; x = acc[ps & 1]; O = []
        for g in range(2):
            P = range(4*g, 4*g+4); T_ = lambda p: x[2*p:2*p+2]; w = lambda p: tmp[2*(p&3):2*(p&3)+2]
            O += [f'v_pk_mul_f32 {w(p)}, {T_(p)}, {T_(p)}' for p in P]
            O += [f'v_pk_fma_f32 {w(p)}, {w(p)}, {c1}, {c0} op_sel:[0,{tb},{tb}] op_sel_hi:[1,{tb},{tb}]' for p in P]
            O += [f'v_pk_fma_f32 {w(p)}, {w(p)}, {T_(p)}, {cL} op_sel:[0,0,{tb}] op_sel_hi:[1,1,{tb}]' for p in P]
            O += [f'v_exp_f32 {w(p)[z]}, {w(p)[z]}' for p in P for z in range(2)]
            O += [f'v_pk_add_f32 {w(p)}, {w(p)}, {cI} op_sel:[0,{tb}] op_sel_hi:[1,{tb}]' for p in P]
            O += [f'v_rcp_f32 {w(p)[z]}, {w(p)[z]}' for p in P for z in range(2)]
            O += [f'v_pk_mul_f32 {w(p)}, {w(p)}, {T_(p)}' for p in P]
            O += [f'v_cvt_pk_bf16_f32 {hp[p]}, {w(p)[0]}, {w(p)[1]}' for p in P]
            O += store(ps, g)
        return O
    tok = {}
    def rd(n):
        ps, ks = n >> 5, n & 31
        tok[n] = a(f'ds_read_b128 {Bf[4*(n%NB):4*(n%NB)+4]}, {k.vL16} offset:{(ps&1)*32768 + ks*1024}')
    F = Fill(a)
    F.add(w4.fill_items() + w4.fill_items())
    for n in range(NB - 1): rd(n)
    for n in range(128):
        ps, ks = n >> 5, n & 31
        ph, tb = ps >> 1, ps & 1
        nx = n + NB - 1
        used = 4
        if nx in (16, 32, 48):
            a.wait_vm(stoks[0] if nx == 16 else toks[nx // 16]); a.barrier(lg=False); used += 8
            if nx == 16: F.add(stats_ops())
            if nx == 32: F.add(w4.fill_items())
        if n % 4 == 0: a.wait_lg(tok[min(n + 3, 127)]); used += 4
        x = acc[ps & 1]
        a(f'v_mfma_f32_32x32x16_bf16 {x}, {AG(128*ph+4*ks, 4)}, {Bf[4*(n%NB):4*(n%NB)+4]}, {x if ks else 0}')
        if nx < 128: rd(nx)
        if ks == 31:
            if ps == 0: F.flush()
            a(f'v_mfma_f32_32x32x16_bf16 {x}, {AC[4*ph:4*ph+4]}, {BM[4*tb:4*tb+4]}, {x}')
            F.flush()
            k.T()
        if ks == 2 and ps >= 1:
            F.add(epi_ops(ps - 1))
            if ps < 3: F.add(w4.fill_items())
        F.gap(24 - used)
    v.release(Bf, st, AC, BM)
    for x in epi_pk(3): put(a, x)
    sB4 = s.alloc('sB4'); vB4a = v.alloc('vB4a', 2)
    a(f'''s_lshl_b32 {sT[0]}, {sJ}, 3
          s_add_u32 {sT[0]}, {sT[0]}, {k.sFr}
          s_add_u32 {sT[0]}, {sT[0]}, {F3}
          s_lshl_b32 {sB4}, {sW}, 14
          v_add_u32 {vB4a[0]}, {sB4}, {k.vTr}
          v_xor_b32 {vB4a[1]}, 64, {vB4a[0]}''')
    w4.slot = lambda q: (w4.sM, w4.vA, (q % 5) * 4096) if q < 10 else (sB4, vB4a, (q - 10) * 4096)
    w4.reuse = lambda q: q - 5 if q < 10 else -1
    for x in w4.cons_items() + w4.cons_items(): put(a, x)
    for q in range(3):
        for x in w4.fill_items() + w4.cons_items(): put(a, x)
    for x in w4.fill_items() + w4.fill_items(): put(a, x)
    a.wait_vm(htok[0])
    a.barrier()
    k.flag_store(sT[0])
    k.T()
    v.release(acc[0], acc[1], tmp, hp, cI, c0, c1, cL, vS1); s.release(sH3, sS2)

def p4(k):
    a, v, s = k.a, k.v, k.s
    vL, sT, sA, sB, sW, sJ, sI = k.vL, k.sT, k.sA, k.sB, k.sW, k.sJ, k.sI
    t = k.e1t; w4 = k.w4
    vB = v.alloc('vB4', 2); vSD = v.alloc('vSD', 2); sSD = s.alloc('sSD', 2); vO = v.alloc('vO'); vSR = v.alloc('vSR'); vRW = v.alloc('vRW'); vRR = v.alloc('vRR', 3)
    side = w4.fill_items() + w4.fill_items() + w4.fill_items() + w4.fill_items()
    main = L(f'''v_lshrrev_b32 {t[0]}, 3, {vL}
          v_mul_u32_u24 {t[0]}, {XTS}, {t[0]}
          v_and_b32 {t[1]}, 7, {vL}
          v_lshl_add_u32 {vSD[0]}, {t[1]}, 4, {t[0]}
          v_add_u32 {vSD[1]}, {8 * XTS - 1024}, {vSD[0]}
          s_lshl_b32 {sSD[0]}, {sJ}, 2
          s_add_u32 {sSD[0]}, {sSD[0]}, {sW}
          s_mul_i32 {sSD[0]}, {sSD[0]}, {16 * XTS}
          s_lshl_b32 {sT[1]}, {sI}, 7
          s_add_u32 {sSD[0]}, {sSD[0]}, {sT[1]}
          s_add_u32 {sSD[0]}, {sSD[0]}, {WS_ST}
          s_lshl_b32 {sSD[1]}, {sW}, 11
          v_and_b32 {t[2]}, 1, {vL}
          v_lshlrev_b32 {t[2]}, 3, {t[2]}
          s_lshl_b32 {sT[4]}, {sW}, 4
          s_add_u32 {sT[4]}, {sT[4]}, {k.sFr}
          s_add_u32 {sT[4]}, {sT[4]}, {F3}
          s_mul_i32 {sT[0]}, {sB}, 114688
          s_sub_u32 {sT[1]}, 114688, {sT[0]}
          v_add_u32 {vB[0]}, {sT[0]}, {k.vL16}
          v_add_u32 {vB[1]}, {sT[1]}, {k.vL16}
          s_mul_i32 {sT[2]}, {sI}, 229376
          s_mul_i32 {sT[3]}, {sW}, 28672
          s_add_u32 {sT[2]}, {sT[2]}, {sT[3]}
          s_add_u32 {sT[2]}, {sT[2]}, {WS_H3}
          v_add_u32 {vRW}, {w4.sM}, {k.vL16}
          v_bfe_u32 {t[4]}, {vL}, 2, 2
          v_lshl_add_u32 {t[4]}, {k.vH}, 2, {t[4]}
          v_lshlrev_b32 {t[4]}, 7, {t[4]}
          v_bfe_u32 {t[5]}, {vL}, 4, 1
          v_lshl_add_u32 {t[4]}, {t[5]}, 5, {t[4]}
          v_and_b32 {t[5]}, 3, {vL}
          v_lshl_add_u32 {t[4]}, {t[5]}, 3, {t[4]}
          s_lshl_b32 {sT[0]}, {sA}, 12
          s_lshl_b32 {sT[1]}, {sB}, 6
          s_add_u32 {sT[0]}, {sT[0]}, {sT[1]}
          s_add_u32 {sT[0]}, {sT[0]}, {L_ST2}
          v_add_u32 {vSR}, {sT[0]}, {t[4]}
          v_lshlrev_b32 {t[5]}, 10, {k.vTt}
          v_lshl_add_u32 {t[5]}, {k.vH}, 4, {t[5]}
          s_lshl_b32 {sT[0]}, {sI}, 16
          s_lshl_b32 {sT[1]}, {sB}, 15
          s_add_u32 {sT[0]}, {sT[0]}, {sT[1]}
          s_lshl_b32 {sT[1]}, {sJ}, 7
          s_add_u32 {sT[0]}, {sT[0]}, {sT[1]}
          s_lshl_b32 {sT[1]}, {sA}, 6
          s_add_u32 {sT[0]}, {sT[0]}, {sT[1]}
          v_add_u32 {vO}, {sT[0]}, {t[5]}
          s_add_u32 {sT[5]}, {k.sFc}, {FC - F1C}''')
    for x in range(1, 4):
        main += L(f's_xor_b32 {sT[0]}, {sW}, {x}\ns_mul_i32 {sT[0]}, {sT[0]}, 20480\ns_add_u32 {sT[0]}, {sT[0]}, {L_W4 + (x-1)*4096}\nv_add_u32 {vRR[x-1]}, {sT[0]}, {k.vL16}')
    weave(a, main, side, 3)
    pc = k.poll_issue(k.vP32, sT[5])
    p = k.poll_issue(t[2], sT[4])
    acc = v.alloc('acc4', 64)
    NR = int(os.environ.get('NR', 13))
    Bq = v.alloc('Bq', 8 * NR)
    k.T()
    k.poll_check(p)
    k.T()
    def ld(q):
        O = [f's_add_u32 {sT[3]}, {sT[2]}, {q * 1024}'] if q % 4 == 0 else []
        for tt in range(2):
            o = 8 * (q % NR) + 4 * tt
            O.append(f'buffer_load_dwordx4 {Bq[o:o+4]}, {vB[tt]}, {k.sWS}, {sT[3]} offen offset:{(q % 4) * 1024}')
        return O
    for q in range(NR):
        for x in ld(q): a(x)
        if q == 5:
            k.poll_check(pc)
            a(f's_add_u32 m0, {sSD[1]}, {L_ST2}\ns_nop 0')
            a(f'buffer_load_dwordx4 {vSD[0]}, {k.sWS}, {sSD[0]} offen lds')
            a(f'buffer_load_dwordx4 {vSD[1]}, {k.sWS}, {sSD[0]} offen offset:1024 lds')
    F = Fill(a)
    while w4.nc < 14: F.add(w4.cons_items())
    for q in range(28):
        for tt in range(2):
            o = 8 * (q % NR) + 4 * tt
            for de in range(2):
                x = acc[16*(de+2*tt):16*(de+2*tt)+16]
                a(f'v_mfma_f32_32x32x16_bf16 {x}, {AG(8*q+4*de, 4)}, {Bq[o:o+4]}, {x if q else 0}')
                if (tt, de) == (1, 1) and q + NR < 28:
                    for y in ld(q + NR): a(y)
                else: F.gap(12)
        if q == 0: k.T()
    assert not F.q
    v.release(Bq, vB)
    k.T()
    for x in range(1, 4):
        for q in range(4): a(f'ds_write_b128 {vRW}, {acc[16*x+4*q:16*x+4*q+4]} offset:{(x-1)*4096 + q*1024}')
    X = k.XN
    for q in range(8): a(f'v_pk_add_f32 {X[2*q:2*q+2]}, {X[2*q:2*q+2]}, {acc[2*q:2*q+2]}')
    U_ = v.alloc('U_', 16)
    for q in range(8): a(f'v_lshlrev_b32 {U_[2*q]}, 16, {k.U8[q]}\nv_and_b32 {U_[2*q+1]}, 0xffff0000, {k.U8[q]}')
    sNL = s.alloc('nl2', 2); a(f's_mov_b32 {sNL[0]}, {fb(-1.4426950408889634)}')
    a.wait_all()
    a.barrier()
    k.T()
    sv = v.alloc('sv', 8)
    for x in range(1, 4):
        for q in range(4): a(f'ds_read_b128 {acc[16*x+4*q:16*x+4*q+4]}, {vRR[x-1]} offset:{q*1024}')
    for q in range(4): a(f'ds_read_b64_tr_b16 {sv[2*q:2*q+2]}, {vSR} offset:{1024*q}')
    for x in range(1, 4):
        for q in range(8): a(f'v_pk_add_f32 {X[2*q:2*q+2]}, {X[2*q:2*q+2]}, {acc[16*x+2*q:16*x+2*q+2]}')
    E = acc[0:16]; S_ = acc[16:32]
    for hf in range(2):
        Q = range(4*hf, 4*hf+4)
        for q in Q: a(f'v_pk_mul_f32 {E[2*q:2*q+2]}, {X[2*q:2*q+2]}, {sNL} op_sel_hi:[1,0]')
        for q in Q: a(f'v_exp_f32 {E[2*q]}, {E[2*q]}\nv_exp_f32 {E[2*q+1]}, {E[2*q+1]}')
        for q in Q: a(f'v_lshlrev_b32 {S_[2*q]}, 16, {sv[q]}\nv_and_b32 {S_[2*q+1]}, 0xffff0000, {sv[q]}')
        for q in Q: a(f'v_pk_add_f32 {E[2*q:2*q+2]}, {E[2*q:2*q+2]}, 1.0 op_sel_hi:[1,0]')
        for q in Q: a(f'v_rcp_f32 {E[2*q]}, {E[2*q]}\nv_rcp_f32 {E[2*q+1]}, {E[2*q+1]}')
        for q in Q: a(f'v_pk_mul_f32 {X[2*q:2*q+2]}, {X[2*q:2*q+2]}, {S_[2*q:2*q+2]}')
        for q in Q: a(f'v_pk_fma_f32 {X[2*q:2*q+2]}, {X[2*q:2*q+2]}, {E[2*q:2*q+2]}, {U_[2*q:2*q+2]}')
        for q in Q: a(f'v_cvt_pk_bf16_f32 {sv[q]}, {X[2*q]}, {X[2*q+1]}')
        a(f'v_permlane32_swap_b32 {sv[4*hf]}, {sv[4*hf+2]}\nv_permlane32_swap_b32 {sv[4*hf+1]}, {sv[4*hf+3]}')
        a(f'buffer_store_dwordx4 {sv[4*hf:4*hf+4]}, {vO}, {k.sOut}, 0 offen offset:{32*hf}')
```

```python
from gen import *
from asmlib import R, TRANS
from collections import deque

def AG(s, n): return R('a', s, n)
def L(txt): return [l.strip() for l in txt.strip().split('\n') if l.strip()]
def cost(x):
    if isinstance(x, tuple): return x[1]
    if x.startswith(TRANS): return 8
    if x.startswith(('buffer_', 'global_')): return 8
    return 4
def put(a, x):
    if isinstance(x, tuple): return x[0]()
    return a(x)
def weave(a, main, side, every, start=0):
    side = deque(side)
    for n, x in enumerate(main):
        put(a, x)
        if side and n >= start and (n - start) % every == every - 1: put(a, side.popleft())
    while side: put(a, side.popleft())
class Fill:
    def __init__(self, a): self.a, self.q, self.carry = a, deque(), 0
    def add(self, items): self.q.extend(items)
    def gap(self, budget):
        self.carry = min(self.carry + budget, budget + 4)
        while self.q and self.carry >= cost(self.q[0]):
            x = self.q.popleft(); self.carry -= cost(x); put(self.a, x)
    def flush(self):
        while self.q: put(self.a, self.q.popleft())

class Stream:
    def __init__(self, k, srd, voff, npair, depth, rowbytes, areg):
        self.k, self.srd, self.voff, self.n, self.depth, self.rb, self.areg = k, srd, voff, npair, depth, rowbytes, areg
        self.sM = k.s.alloc('stM'); self.sO = k.s.alloc('stO'); self.vA = k.v.alloc('stA', 2)
        self.ftok = {}; self.ctok = {}; self.nf = 0; self.nc = 0
        self.slot = lambda q: (self.sM, self.vA, (q % depth) * 4096)
        self.reuse = lambda q: q - depth
    def fill_items(self):
        a = self.k.a; q = self.nf
        assert q < self.n
        self.nf += 1
        sM, _, o = self.slot(q)
        def head():
            r = self.reuse(q)
            if r >= 0: a.wait_lg(self.ctok[r])
            a(f's_add_u32 m0, {sM}, {o}')
            a(f's_add_u32 {self.sO}, {self.sO}, {32 * self.rb}')
        def dma(e):
            def f(): self.ftok[q] = a(f'buffer_load_dwordx4 {self.voff[e]}, {self.srd}, {self.sO} offen offset:{1024*e} lds')
            return (f, 8)
        return [(head, 8)] + [dma(e) for e in range(4)]
    def cons_items(self):
        a = self.k.a; q = self.nc
        assert q < self.nf
        self.nc += 1
        _, vA, o = self.slot(q)
        out = []
        for st in range(2):
            for ph in range(2):
                d = self.areg(2 * q + st, ph)
                for io in range(2):
                    def f(d=d, ph=ph, io=io, st=st):
                        if (st, ph, io) == (0, 0, 0): a.wait_vm(self.ftok[q])
                        self.ctok[q] = a(f'ds_read_b64_tr_b16 {d[2*io:2*io+2]}, {vA[ph]} offset:{o + 2048*st + 1024*io}')
                    out.append((f, 4))
        return out
    def free(self): self.k.s.release(self.sM, self.sO); self.k.v.release(self.vA)

def cs3_items(k, upto):
    out = []
    while k.ncs3 < upto:
        q = k.ncs3; k.ncs3 += 1
        for ph in range(2):
            d = k.cs3a[4 * ph:4 * ph + 4]
            out.append(f'v_mfma_f32_16x16x32_bf16 {d}, {AG(128 * ph + 4 * q, 4)}, {k.B16}, {d if q else 0}')
    return out

def w_dma_items(k, srd, toks):
    a = k.a; out = []
    for c in range(4):
        out.append((lambda c=c: a(f's_add_u32 m0, {k.sW12}, {L_W + c*16384}\ns_add_u32 {k.sT[5]}, {k.sWoff}, {c*131072}'), 8))
        for e in range(4):
            def f(c=c, e=e): toks[c] = a(f'buffer_load_dwordx4 {k.vWd[e]}, {srd}, {k.sT[5]} offen offset:{1024*e} lds')
            out.append((f, 8))
    return out
```

```python
import sys, struct
sys.path.insert(0, 'gen')
from asmlib import Asm, Regs, R

def fb(x): return '0x%08x' % struct.unpack('<I', struct.pack('<f', x))[0]

NAME = 'recurrent_scan__ssm_conv_s4d__mixer_s_mlp__prompt'
WS_H, WS_X1, WS_H3 = 0, 2 << 20, 4 << 20
WS_XT, WS_ST, WS_STAT, WS_FLAG, WS_TS = 12 << 20, 15 << 20, 18 << 20, 19 << 20, (19 << 20) + 65536
WS_SIZE = 20 << 20
XTS = 4224
F1R, F2, F3, F1C, FC = 0, 4096, 8192, 12288, 16384
UKC = 17408
L_W = 69632
L_XS = 135168
L_STATP = 145408
L_CP = 69632; CS = 4160
L_STG = 102912
L_UC = 152064; UCS = 5088; UCP = 992
L_KT = 152064 + 16; KTS = 3088
L_CSX = 162240
KG_CH = 27984; KG_R = 528
L_ST2 = 69632
L_W4 = 77824
OOB = 0x80000000
import os
FINE = os.environ.get('FINE')
TSOP = 's_memtime' if os.environ.get('TSCLK') else 's_memrealtime'

class K:
    def __init__(self, stop=99, ts=False):
        self.a = Asm(); self.v = Regs('v', 256, 1); self.s = Regs('s', 100, 3)
        self.v.top = {'vts','lane','par','vWd','vW3','vnonce','flagoff','GA','vTrP','B16','h','tt','acc','U8','vCW','vCR','l16','vP8','vP32','cs3a','stA','t','CS3','D','junk','vT','cA','cB','cS','polld','vB4a','vB4','vSD','vO','vSR','vRW','vRR'} | set(os.environ.get('TOPX','').split(','))
        self.stop = stop; self.ts = ts; self.nts = 0

    def T(self):
        if not self.ts: return
        if self.nts: self.a(f'v_writelane_b32 {self.vTS}, {self.tsr[0]}, {self.nts - 1}')
        self.nts += 1
        self.a(f'{TSOP} {self.tsr}')

    def srd(self, name, ptr, nbytes):
        r = self.s.alloc(name, 4)
        self.a(f's_mov_b32 {r[0]}, {ptr[0]}\ns_mov_b32 {r[1]}, {ptr[1]}\ns_mov_b32 {r[2]}, {hex(nbytes)}\ns_mov_b32 {r[3]}, 0x20000')
        return r

    def sconst(self, name, val):
        r = self.s.alloc(name); self.a(f's_mov_b32 {r}, {val}'); return r

    def flag_store(self, soff):
        self.a(f'buffer_store_dwordx2 {self.vNonce}, {self.vFlagOff}, {self.sWS}, {soff} offen sc1')

    def poll_issue(self, voff, soff):
        a = self.a
        d = self.v.alloc('polld', 2)
        a(f'buffer_load_dwordx2 {d}, {voff}, {self.sWS}, {soff} offen sc1')
        return (d, voff, soff)

    def poll_check(self, p):
        a = self.a; d, voff, soff = p
        ok = a.label_name('PK'); lp = a.label_name('PL')
        a(f'v_cmp_ne_u64 vcc, {self.sNonce}, {d}')
        a.raw('s_nop 4')
        a.raw(f's_cbranch_vccz {ok}')
        a(f's_mov_b32 {self.sT[0]}, 0')
        a.label(lp)
        a.raw(f'buffer_load_dwordx2 {d}, {voff}, {self.sWS}, {soff} offen sc1')
        a.raw(f's_add_u32 {self.sT[0]}, {self.sT[0]}, 1')
        a.raw('s_waitcnt vmcnt(0)')
        a.raw(f'v_cmp_ne_u64 vcc, {self.sNonce}, {d}')
        a.raw(f's_cmp_gt_u32 {self.sT[0]}, 0x40000')
        a.raw(f's_cbranch_scc1 {ok}')
        a.raw('s_nop 2')
        a.raw(f's_cbranch_vccnz {lp}')
        a.label(ok)
        self.v.release(d)

    def gelu_ops(self, acc, cs, negm, c0r, c1r3, ir, out, tmp):
        def sel(x): return x[0], x[1]
        ops = []
        for g in range(2):
            P = range(4 * g, 4 * g + 4)
            t = lambda p: acc[2 * p:2 * p + 2]
            w = lambda p: tmp[2 * (p & 3):2 * (p & 3) + 2]
            for p in P:
                r, h = negm
                ops.append(f'v_pk_fma_f32 {t(p)}, {cs[2*p:2*p+2]}, {r}, {t(p)} op_sel:[0,{h},0] op_sel_hi:[1,{h},1]')
            for p in P: ops.append(f'v_pk_mul_f32 {w(p)}, {t(p)}, {t(p)}')
            for p in P:
                (r1, h1), (r0, h0) = c1r3, c0r
                ops.append(f'v_pk_fma_f32 {w(p)}, {w(p)}, {r1}, {r0} op_sel:[0,{h1},{h0}] op_sel_hi:[1,{h1},{h0}]')
            for p in P: ops.append(f'v_pk_mul_f32 {w(p)}, {w(p)}, {t(p)}')
            for p in P:
                ops.append(f'v_exp_f32 {w(p)[0]}, {w(p)[0]}'); ops.append(f'v_exp_f32 {w(p)[1]}, {w(p)[1]}')
            for p in P:
                r, h = ir
                ops.append(f'v_pk_fma_f32 {w(p)}, {w(p)}, {r}, {r} op_sel:[0,{h},{h}] op_sel_hi:[1,{h},{h}]')
            for p in P:
                ops.append(f'v_rcp_f32 {w(p)[0]}, {w(p)[0]}'); ops.append(f'v_rcp_f32 {w(p)[1]}, {w(p)[1]}')
            for p in P: ops.append(f'v_pk_mul_f32 {w(p)}, {w(p)}, {t(p)}')
            for p in P: ops.append(f'v_cvt_pk_bf16_f32 {out[p]}, {w(p)[0]}, {w(p)[1]}')
        return ops

    def cmul(self, d, x, y, t):
        self.a(f'v_pk_mul_f32 {t}, {x}, {y} op_sel:[0,0] op_sel_hi:[0,1]')
        self.a(f'v_pk_fma_f32 {d}, {x}, {y}, {t} op_sel:[1,1,0] op_sel_hi:[1,0,1] neg_lo:[1,0,0]')

    def finish(self):
        a = self.a
        if self.ts:
            self.T()
            a.wait_all()
            self.T()
            o = self.v.alloc('tso')
            a(f's_lshl_b32 {self.sT[0]}, s2, 10\ns_lshl_b32 {self.sT[1]}, {self.sW}, 8\ns_add_u32 {self.sT[0]}, {self.sT[0]}, {self.sT[1]}\ns_add_u32 {self.sT[0]}, {self.sT[0]}, {WS_TS}')
            a(f'v_and_b32 {o}, 63, v0\nv_lshlrev_b32 {o}, 2, {o}')
            a(f'buffer_store_dword {self.vTS}, {o}, {self.sWS}, {self.sT[0]} offen')
        a.wait_all()
        a.label('END')
        a.raw('s_endpgm')

    def build(self):
        import phases
        steps = phases.STEPS
        for n, f in enumerate(steps):
            if n > self.stop: break
            self.a.comment(f'---- {f.__name__} ----')
            f(self)
        self.finish()
        hdr = open(f'cdna_kernels/{NAME}.s.ref').read()
        top = hdr[:hdr.index('; @launch')]
        return top + f'''; @launch grid=(256,1,1) block=(256,1,1) lds=163840
.amdgcn_target "amdgcn-amd-amdhsa--gfx950"
.text
.globl {NAME}_kernel
.p2align 8
.type {NAME}_kernel,@function
{NAME}_kernel:
{self.a.text()}
.section .rodata,"a"
.p2align 6
.amdhsa_kernel {NAME}_kernel
  .amdhsa_next_free_vgpr 512
  .amdhsa_next_free_sgpr 102
  .amdhsa_accum_offset 256
  .amdhsa_group_segment_fixed_size 0
  .amdhsa_kernarg_size 120
  .amdhsa_user_sgpr_count 2
  .amdhsa_user_sgpr_kernarg_segment_ptr 1
  .amdhsa_system_sgpr_workgroup_id_x 1
.end_amdhsa_kernel
'''

if __name__ == '__main__':
    import argparse
    ap = argparse.ArgumentParser()
    ap.add_argument('--stop', type=int, default=99); ap.add_argument('--ts', action='store_true'); ap.add_argument('-o', default=f'cdna_kernels/{NAME}.s')
    g = ap.parse_args()
    k = K(g.stop, g.ts)
    open(g.o, 'w').write(k.build())
    print('vgpr hi', k.v.hi, 'sgpr hi', k.s.hi, 'instrs', len(k.a.ins))
```

```python
from util import *
def prologue(k):
    a, v, s = k.a, k.v, k.s
    a.label('KSTART')
    a('s_cmp_ge_u32 s2, 0x100')
    a.raw('s_cbranch_scc1 END')
    ka = s.alloc('ka', 16); kb = s.alloc('kb', 8); kc = s.alloc('kc', 4); kd = s.alloc('kd', 2)
    k.kc = kc
    a(f's_load_dwordx16 {ka}, s[0:1], 0\ns_load_dwordx8 {kb}, s[0:1], 64\ns_load_dwordx4 {kc}, s[0:1], 96\ns_load_dwordx2 {kd}, s[0:1], 112')
    if k.ts:
        k.tsr = s.alloc('ts', 2); k.vTS = v.alloc('vts'); k.T()
    k.sT = sT = s.alloc('sT', 6, 2)
    k.sI = sI = s.alloc('i'); k.sJ = sJ = s.alloc('j'); k.sW = sW = s.alloc('w'); k.sA = sA = s.alloc('a'); k.sB = sB = s.alloc('b')
    k.sY = sY = s.alloc('y')
    k.vL = vL = v.alloc('lane'); k.junk = junk = v.alloc('junk')
    t = v.alloc('pt', 8)
    a(f'''v_lshrrev_b32 {t[0]}, 6, v0
          v_and_b32 {vL}, 63, v0
          s_lshr_b32 {sY}, s2, 3
          v_readfirstlane_b32 {sW}, {t[0]}
          s_getpc_b64 {sT[2:4]}''')
    a.label('PCREF')
    a(f'''s_lshl_b32 {sT[0]}, {sY}, 3
          s_lshl_b32 {sT[1]}, {sW}, 1
          s_add_u32 {sT[0]}, {sT[0]}, {sT[1]}
          v_add_u32 {t[1]}, {sT[0]}, {vL}
          v_lshlrev_b32 {t[1]}, 7, {t[1]}
          v_min_u32 {t[1]}, END-PCREF, {t[1]}
          s_mov_b64 exec, 3''')
    a.touch(f'global_load_dword {junk}, {t[1]}, {sT[2:4]}')
    a(f'''s_mov_b64 exec, -1
          s_and_b32 {sT[0]}, s2, 7
          s_lshr_b32 {sT[1]}, s2, 6
          s_lshl_b32 {sT[4]}, {sT[0]}, 2
          s_add_u32 {sI}, {sT[4]}, {sT[1]}
          s_and_b32 {sJ}, {sY}, 7
          s_and_b32 {sA}, {sW}, 1
          s_lshr_b32 {sB}, {sW}, 1''')
    k.sRg = sRg = s.alloc('rg'); k.sRu = sRu = s.alloc('ru'); k.sNeg = sNeg = s.alloc('neg'); k.sMag = sMag = s.alloc('mag')
    sR0 = s.alloc('r0'); k.sD = sD = s.alloc('d')
    vTW = v.alloc('vTW'); vTU = v.alloc('vTU')
    a(f'''s_bfe_u32 {sNeg}, {sJ}, 0x10001
          s_lshr_b32 {sMag}, {sJ}, 2
          s_add_u32 {sMag}, {sMag}, 1
          s_sub_u32 {sT[1]}, 2, {sMag}
          s_cmp_eq_u32 {sNeg}, 1
          s_cselect_b32 {sRg}, {sMag}, {sT[1]}
          s_cselect_b32 {sRu}, 0, 2
          s_lshl_b32 {sR0}, {sI}, 6
          s_sub_u32 {sR0}, {sR0}, {sRu}
          s_lshl_b32 {sT[1]}, {sY}, 2
          s_add_u32 {sT[1]}, {sT[1]}, {sW}
          s_lshl_b32 {sT[4]}, {sT[1]}, 12
          v_lshl_add_u32 {vTW}, {vL}, 7, {sT[4]}
          s_lshl_b32 {sT[0]}, {sT[0]}, 18
          s_lshl_b32 {sT[1]}, {sT[1]}, 11
          s_add_u32 {sT[0]}, {sT[0]}, {sT[1]}
          v_lshl_add_u32 {vTU}, {vL}, 7, {sT[0]}
          s_lshl_b32 {sD}, {sJ}, 6
          s_lshl_b32 {sT[0]}, {sI}, 1
          s_add_u32 {sD}, {sD}, {sT[0]}
          s_add_u32 {sD}, {sD}, {sB}
          s_lshl_b32 {sT[0]}, {sD}, 8
          s_lshl_b32 {sT[1]}, {sA}, 7
          s_add_u32 {sT[0]}, {sT[0]}, {sT[1]}
          s_lshl_b32 {sT[1]}, {sD}, 1
          v_lshl_add_u32 {t[6]}, {vL}, 1, {sT[0]}
          v_mov_b32 {t[7]}, {sT[1]}''')
    vU = v.alloc('vU', 4); vUX = v.alloc('vUX')
    a(f'''v_lshrrev_b32 {t[0]}, 4, {vL}
          v_and_b32 {t[1]}, 15, {vL}
          v_xor_b32 {t[1]}, {t[1]}, {t[0]}
          v_lshlrev_b32 {t[1]}, 4, {t[1]}
          s_lshl_b32 {sT[0]}, {sW}, 4
          s_add_u32 {sT[0]}, {sT[0]}, {sR0}
          v_add_u32 {t[2]}, {sT[0]}, {t[0]}
          v_lshlrev_b32 {t[2]}, 10, {t[2]}
          v_add_u32 {vU[0]}, {t[2]}, {t[1]}''')
    for e in range(1, 4):
        a(f'v_xor_b32 {t[3]}, {64*e}, {t[1]}\nv_add_u32 {t[3]}, {3072*e}, {t[3]}\nv_add_u32 {vU[e]}, {t[2]}, {t[3]}')
    a(f'''s_add_u32 {sT[0]}, {sR0}, 64
          v_add_u32 {t[2]}, {sT[0]}, {t[0]}
          v_lshlrev_b32 {t[2]}, 10, {t[2]}
          s_lshl_b32 {sT[0]}, {sW}, 8
          v_add3_u32 {vUX}, {t[2]}, {t[1]}, {sT[0]}
          v_mov_b32 {t[5]}, {hex(OOB)}
          s_mul_i32 {sT[0]}, {sW}, {UKC}
          s_add_u32 m0, {sT[0]}, 16384''')
    k.sW12 = sW12 = s.alloc('w12')
    a(f's_lshl_b32 {sW12}, {sW}, 12')
    if FINE: k.T()
    k.vPar = par = v.alloc('par', 8, 2)
    for q in range(4): a(f'global_load_ushort {par[q]}, {t[6]}, {ka[2+2*q:4+2*q]}')
    a(f'global_load_ushort {par[4]}, {t[7]}, {ka[10:12]}\nglobal_load_ushort {par[5]}, {t[7]}, {ka[12:14]}')
    a(f'v_xor_b32 {t[6]}, 0x80, {t[6]}')
    a(f'global_load_ushort {par[6]}, {t[6]}, {ka[6:8]}\nglobal_load_ushort {par[7]}, {t[6]}, {ka[8:10]}')
    k.sU = k.srd('sU', ka[0:2], 2048 * 1024)
    k.sW1 = k.srd('sW1', kb[0:2], 512 * 1024)
    a('s_mov_b32 exec_lo, 0xffff\ns_mov_b32 exec_hi, 0')
    a.touch(f'buffer_load_dword {junk}, {vTU}, {k.sU}, 0 offen')
    a('s_mov_b32 exec_lo, -1')
    a.touch(f'buffer_load_dword {junk}, {vTW}, {k.sW1}, 0 offen')
    a(f'buffer_load_dwordx4 {vUX}, {k.sU}, 0 offen lds')
    a('s_mov_b32 exec_hi, -1')
    def udma(kc_):
        a(f's_add_u32 m0, {sW12}, {kc_*(UKC-256)}')
        for e in range(4): k.utok = a(f'buffer_load_dwordx4 {vU[e]}, {k.sU}, 0 offen offset:{1024*e+256*kc_} lds')
    udma(0)
    udma(1)
    s.release(ka)
    k.T()
    k.sW2 = k.srd('sW2', kb[2:4], 512 * 1024)
    k.sW3 = k.srd('sW3', kb[4:6], 512 * 3584)
    k.sW4 = k.srd('sW4', kb[6:8], 1792 * 1024)
    k.sOut = k.srd('sOut', kc[0:2], 2048 * 1024)
    k.sWS = k.srd('sWS', kd, WS_SIZE)
    s.release(kb, kd, sR0)
    k.sNonce = s.alloc('nonce', 2); k.vNonce = v.alloc('vnonce', 2); k.vFlagOff = v.alloc('flagoff')
    skip = a.label_name('NN')
    a(f'''v_cmp_eq_u32 vcc, 0, v0
          v_mov_b32 {t[0]}, 0
          s_or_b32 {sT[0]}, s2, {sW}
          v_cndmask_b32 {k.vFlagOff}, {t[5]}, {t[0]}, vcc
          s_cmp_lg_u32 {sT[0]}, 0''')
    a.raw(f's_cbranch_scc1 {skip}')
    for x in L(f'''s_memrealtime {k.sNonce}
          s_waitcnt lgkmcnt(0)
          s_or_b32 {k.sNonce[0]}, {k.sNonce[0]}, 1
          v_mov_b32 {k.vNonce[0]}, {k.sNonce[0]}
          v_mov_b32 {k.vNonce[1]}, {k.sNonce[1]}
          s_mov_b64 exec, 1
          global_store_dwordx2 {t[0]}, {k.vNonce}, {kc[2:4]} sc1
          s_mov_b64 exec, -1'''): a.raw(x)
    a.label(skip)
    k.vWd = vWd = v.alloc('vWd', 4); k.vW3 = vW3 = v.alloc('vW3', 4); k.sWoff = sWoff = s.alloc('woff')
    a(f'''v_lshrrev_b32 {t[3]}, 3, {vL}
          v_and_b32 {t[4]}, 7, {vL}
          v_bfe_u32 {t[2]}, {vL}, 4, 1
          v_lshlrev_b32 {t[2]}, 2, {t[2]}
          v_xor_b32 {t[4]}, {t[4]}, {t[2]}
          v_lshlrev_b32 {t[4]}, 4, {t[4]}
          v_lshl_add_u32 {vWd[0]}, {t[3]}, 10, {t[4]}
          v_mul_u32_u24 {t[3]}, 3584, {t[3]}
          v_add_u32 {vW3[0]}, {t[3]}, {t[4]}
          s_cmp_eq_u32 {sW}, 3
          s_cselect_b32 {sT[2]}, 64, 128
          v_cmp_le_u32 vcc, {sT[2]}, {t[4]}
          s_lshl_b32 {sWoff}, {sW}, 15
          s_lshl_b32 {sT[0]}, {sJ}, 7
          s_add_u32 {sWoff}, {sWoff}, {sT[0]}
          v_cndmask_b32 {vW3[0]}, {vW3[0]}, {t[5]}, vcc''')
    for e in range(1, 4): a(f'v_add_u32 {vWd[e]}, {7168*e}, {vWd[0]}\nv_add_u32 {vW3[e]}, {(8*3584-1024)*e}, {vW3[0]}')
    k.vT = vT = v.alloc('vT', 3, 1)
    a(f'''s_lshl_b32 {sT[0]}, {sY}, 2
          s_add_u32 {sT[0]}, {sT[0]}, {sW}
          s_lshl_b32 {sT[0]}, {sT[0]}, 15
          s_and_b32 {sT[1]}, s2, 7
          s_lshl_b32 {sT[1]}, {sT[1]}, 7
          s_add_u32 {sT[0]}, {sT[0]}, {sT[1]}
          v_lshl_add_u32 {vT[0]}, {vL}, 10, {sT[0]}
          v_cmp_lt_u32 vcc, 31, {vL}
          v_cndmask_b32 {vT[0]}, {vT[0]}, {t[5]}, vcc
          v_subrev_u32 {vT[1]}, {4096*128}, {vT[0]}
          v_subrev_u32 {vT[2]}, {18432*128}, {vT[0]}''')
    k.vB = vB = v.alloc('vB', 8); k.vAe = vAe = v.alloc('vAe'); k.vAo = vAo = v.alloc('vAo')
    k.vTr = vTr = v.alloc('vTrP'); k.B16 = B16 = v.alloc('B16', 4); k.vH = vH = v.alloc('h'); k.vTt = vTt = v.alloc('tt')
    k.vSW = vSW = v.alloc('vSW'); k.vSG = vSG = v.alloc('vSG'); k.vSU = vSU = v.alloc('vSU'); k.vUo = vUo = v.alloc('vUo', 4)
    a(f'''v_and_b32 {vTt}, 31, {vL}
          v_lshrrev_b32 {vH}, 5, {vL}
          s_lshl_b32 {sT[0]}, {sB}, 5
          s_add_u32 {sT[1]}, {sT[0]}, {sRg}
          v_add_u32 {t[0]}, {sT[1]}, {vTt}
          v_and_b32 {t[1]}, 15, {t[0]}
          v_xor_b32 {t[1]}, {t[1]}, {vH}
          s_lshl_b32 {sT[2]}, {sA}, 1
          v_xor_b32 {t[1]}, {sT[2]}, {t[1]}
          v_lshlrev_b32 {t[1]}, 4, {t[1]}
          v_lshl_add_u32 {vB[0]}, {t[0]}, 8, {t[1]}''')
    for q in range(1, 8): a(f'v_xor_b32 {vB[q]}, {32*q}, {vB[0]}')
    a(f'''v_lshlrev_b32 {vSG}, 5, {t[0]}
          v_add_u32 {vSG}, {L_STATP}, {vSG}
          v_add_u32 {t[2]}, {sT[2]}, {vH}
          v_lshl_add_u32 {vSW}, {t[2]}, 3, {vSG}
          s_add_u32 {sT[1]}, {sT[0]}, {sRu}
          v_add_u32 {t[0]}, {sT[1]}, {vTt}
          v_lshlrev_b32 {vSU}, 5, {t[0]}
          v_add_u32 {vSU}, {L_STATP}, {vSU}
          s_and_b32 {sT[1]}, {sJ}, 1
          s_lshl_b32 {sT[1]}, {sT[1]}, 3
          s_lshl_b32 {sT[3]}, {sA}, 2
          s_add_u32 {sT[1]}, {sT[1]}, {sT[3]}
          v_and_b32 {t[1]}, 15, {t[0]}
          v_xor_b32 {t[1]}, {sT[1]}, {t[1]}
          v_lshlrev_b32 {t[1]}, 4, {t[1]}
          v_lshl_add_u32 {t[1]}, {t[0]}, 8, {t[1]}
          v_lshl_add_u32 {t[1]}, {vH}, 3, {t[1]}
          s_lshr_b32 {sT[1]}, {sJ}, 1
          s_mul_i32 {sT[1]}, {sT[1]}, {UKC}
          v_add_u32 {vUo[0]}, {sT[1]}, {t[1]}
          v_xor_b32 {vUo[1]}, 16, {vUo[0]}
          v_xor_b32 {vUo[2]}, 32, {vUo[0]}
          v_xor_b32 {vUo[3]}, 48, {vUo[0]}''')
    k.vXW = vXW = v.alloc('vXW'); k.vXR = vXR = v.alloc('vXR'); k.vXT = vXT = v.alloc('vXT')
    a(f'''v_bfe_u32 {t[0]}, {vL}, 2, 2
          v_and_b32 {t[1]}, 3, {vL}
          v_bfe_u32 {t[2]}, {vL}, 4, 1
          v_lshlrev_b32 {t[1]}, 3, {t[1]}
          v_lshl_add_u32 {t[1]}, {t[2]}, 5, {t[1]}
          s_mul_i32 {sT[0]}, {sW}, {XSW}
          s_add_u32 {sT[0]}, {sT[0]}, {L_XS}
          v_lshl_add_u32 {t[3]}, {vH}, 3, {t[0]}
          v_mul_u32_u24 {t[3]}, 72, {t[3]}
          v_add3_u32 {vXR}, {t[3]}, {t[1]}, {sT[0]}
          v_mul_u32_u24 {t[3]}, 72, {vTt}
          v_lshl_add_u32 {t[3]}, {vH}, 3, {t[3]}
          v_add_u32 {vXW}, {sT[0]}, {t[3]}
          v_mul_u32_u24 {t[3]}, 80, {vTt}
          v_lshl_add_u32 {t[3]}, {vH}, 4, {t[3]}
          v_add_u32 {vXT}, {sT[0]}, {t[3]}
          v_lshrrev_b32 {t[2]}, 1, {t[0]}
          v_lshl_add_u32 {t[1]}, {t[2]}, 6, {t[1]}
          v_lshl_add_u32 {t[1]}, {t[0]}, 7, {t[1]}
          v_lshl_add_u32 {vTr}, {vH}, 9, {t[1]}
          v_lshl_add_u32 {t[1]}, {vH}, 10, {t[1]}
          s_lshl_b32 {sT[1]}, {sA}, 6
          v_xor_b32 {t[1]}, {sT[1]}, {t[1]}
          s_lshl_b32 {sT[1]}, {sA}, 11
          s_add_u32 {sT[3]}, {sT[1]}, {L_W}
          s_sub_u32 {sT[1]}, {L_W}, {sT[1]}
          v_add_u32 {vAe}, {sT[3]}, {t[1]}
          v_add_u32 {vAo}, {sT[1]}, {t[1]}
          v_lshrrev_b32 {t[0]}, 3, {vL}
          v_lshrrev_b32 {t[1]}, 4, {vL}
          v_xor_b32 {t[0]}, {t[0]}, {t[1]}
          v_and_b32 {t[0]}, 1, {t[0]}
          v_cmp_eq_u32 vcc, 0, {t[0]}
          v_mov_b32 {t[2]}, 0x3f803f80''')
    for q in range(4): a(f'v_cndmask_b32 {B16[q]}, 0, {t[2]}, vcc')
    k.vXE = vXE = v.alloc('vXE', 2); k.vCW = vCW = v.alloc('vCW'); k.vCR = vCR = v.alloc('vCR'); k.vL16 = vL16 = v.alloc('l16')
    k.sXM = sXM = s.alloc('xm', 2); k.sHo = sHo = s.alloc('ho'); k.sXo = sXo = s.alloc('xo'); k.sFr = sFr = s.alloc('fr'); k.sFc = sFc = s.alloc('fc')
    a(f'''s_cmp_eq_u32 {sNeg}, 1
          s_cselect_b32 {sT[0]}, 0, 64
          s_cselect_b32 {sXM[0]}, 15, 31
          s_lshl_b32 {sXM[0]}, 1, {sXM[0]}
          s_cmp_eq_u32 {sMag}, 1
          s_cselect_b32 {sXM[0]}, {sXM[0]}, 0x80008000
          s_mov_b32 {sXM[1]}, 0
          v_and_b32 {t[0]}, 1, {t[1]}
          v_add_u32 {t[0]}, {sT[0]}, {t[0]}
          v_and_b32 {t[2]}, 15, {vL}
          v_lshlrev_b32 {t[2]}, 4, {t[2]}
          v_lshl_add_u32 {t[2]}, {t[0]}, 8, {t[2]}
          s_mul_i32 {sT[1]}, {sW}, {UKC}
          v_add_u32 {vXE[0]}, {sT[1]}, {t[2]}
          s_lshl_b32 {sT[1]}, {sW}, 3
          s_add_u32 {sT[1]}, {sT[1]}, {L_STATP}
          v_lshl_add_u32 {vXE[1]}, {t[0]}, 5, {sT[1]}
          v_bfe_u32 {t[0]}, {vL}, 3, 1
          v_lshlrev_b32 {t[2]}, 4, {t[1]}
          v_lshl_add_u32 {t[0]}, {t[0]}, 6, {t[2]}
          s_lshl_b32 {sT[0]}, {sW}, 8
          s_add_u32 {sT[0]}, {sT[0]}, {L_CSX}
          v_add_u32 {vCW}, {sT[0]}, {t[0]}
          v_lshl_add_u32 {vCR}, {vH}, 4, {sT[0]}
          v_lshlrev_b32 {vL16}, 4, {vL}
          s_lshl_b32 {sHo}, {sI}, 16
          s_lshl_b32 {sT[0]}, {sB}, 15
          s_add_u32 {sHo}, {sHo}, {sT[0]}
          s_lshl_b32 {sT[0]}, {sJ}, 12
          s_add_u32 {sHo}, {sHo}, {sT[0]}
          s_lshl_b32 {sT[0]}, {sA}, 11
          s_add_u32 {sHo}, {sHo}, {sT[0]}
          s_lshl_b32 {sXo}, {sJ}, 5
          s_add_u32 {sXo}, {sXo}, {sI}
          s_mul_i32 {sXo}, {sXo}, {XTT}
          s_lshl_b32 {sT[1]}, {sW}, 11
          s_add_u32 {sXo}, {sXo}, {sT[1]}
          s_add_u32 {sXo}, {sXo}, {WS_XT}
          s_lshl_b32 {sFr}, {sI}, 7
          s_add_u32 {sFr}, {sFr}, {WS_FLAG}
          s_lshl_b32 {sFc}, {sJ}, 8
          s_add_u32 {sFc}, {sFc}, {WS_FLAG + F1C}''')
    s.release(sRg, sRu, sNeg, sMag)
    k.sOnes = k.sconst('ones', '0x3f803f80'); k.sI512 = k.sconst('i512', fb(1.0 / 512)); k.sEps = k.sconst('eps', fb(1e-5))
    k.sC0 = k.sconst('c0', fb(-2.302208198)); k.sC1 = k.sconst('c1', fb(-0.1029432397)); k.sL2 = k.sconst('log2e', fb(1.4426950408889634))
    k.GA = GA = v.alloc('GA', 9, 1)
    sX = k.sconst('gx', hex((L_KT - 68096) & 0xffffffff))
    a(f'''v_lshlrev_b32 {t[0]}, 3, v0
          v_sub_u32 {t[0]}, 2047, {t[0]}
          v_cvt_f32_i32 {t[1]}, {t[0]}
          v_lshlrev_b32 {t[0]}, 2, {t[0]}
          v_add_u32 {t[0]}, {L_KT}, {t[0]}''')
    for q in range(0, 10, 2):
        a(f'v_add_f32 {t[2]}, {fb(-q)}, {t[1]}\nv_add_f32 {t[3]}, {fb(-q-1)}, {t[1]}')
        a(f'v_max_f32 {t[2]}, {fb(128.0)}, {t[2]}\nv_max_f32 {t[3]}, {fb(128.0)}, {t[3]}')
        a(f'v_cvt_pk_bf16_f32 {t[2]}, {t[2]}, {t[3]}')
        for z in range(2):
            if q + z > 8: continue
            a(f'v_mad_u32_u16 {t[4]}, {t[2]}, 4, {sX} op_sel:[{z},0,0,0]\nv_subrev_u32 {t[5]}, {4*(q+z)}, {t[0]}\nv_min_i32 {GA[q+z]}, {t[4]}, {t[5]}')
    s.release(sX)
    k.T()
    udma(2); udma(3)
    v.release(vU, vUX, vTU)
    k.wt = {}
    WD = w_dma_items(k, k.sW1, k.wt)
    sweep = [(lambda q=q: a.touch(f'buffer_load_dword {junk}, {vT[q]}, {(k.sW2, k.sW3, k.sW4)[q]}, 0 offen'), 8) for q in range(3)]
    kchains(k, t, WD + ([] if os.environ.get('NOSWEEP') else sweep))
    v.release(vT)
    if FAST:
        k.sSlow = s.alloc('slow'); k.vGw = v.alloc('vGw', 2)
        skip = a.label_name('NX')
        a(f'''s_getreg_b32 {k.sSlow}, hwreg(HW_REG_XCC_ID, 0, 3)
          s_lshl_b32 {sT[0]}, {sI}, 2
          s_or_b32 {k.sSlow}, {k.sSlow}, 8
          s_lshl_b32 {sT[1]}, {sJ}, 2
          v_mov_b32 {k.vGw[0]}, {sT[0]}
          s_lshl_b32 {sT[1]}, {k.sSlow}, {sT[1]}
          s_mul_i32 {k.sSlow}, {k.sSlow}, 0x11111111
          v_mov_b32 {t[0]}, {sT[1]}
          s_cmp_lg_u32 {sW}, 0''')
        a.raw(f's_cbranch_scc1 {skip}')
        for x in L(f'''s_mov_b64 exec, 1
          global_atomic_or {k.vGw[0]}, {t[0]}, {kc[2:4]} offset:128 sc1
          s_mov_b64 exec, -1'''): a.raw(x)
        a.label(skip)
    w3_setup(k)
    k.T()
    v.release(vTW, t)

def w3_setup(k):
    a, v, s = k.a, k.v, k.s
    sT, sW, sJ = k.sT, k.sW, k.sJ
    k.NP = NP = int(os.environ.get('NP', 0)); k.NE = NE = NP + int(os.environ.get('NE', 2))
    k.w3 = w3 = Stream(k, k.sW3, k.vW3, 16, 3, 3584, lambda q, ph: AG(128 * ph + 4 * q, 4))
    k.sRot = s.alloc('rot3'); k.sW2o = s.alloc('w2o')
    sSU = s.alloc('sSU'); vSU = v.alloc('stA', 2); k.w3x = (sSU, vSU)
    w3.slot = lambda q: (sSU, vSU, L_SP - L_SU) if q < NP else (sSU, vSU, 0) if q < NE or (q - NE) % 3 == 2 else (w3.sM, w3.vA, ((q - NE) % 3) * 4096)
    w3.reuse = lambda q: q - 1 if q < NE and q != NP else -1 if q < NE + 2 else (NE - 1 if NE > NP else -1) if q == NE + 2 else q - 3
    a(f'''s_lshl_b32 {sSU}, {sW}, 12
          s_add_u32 {sSU}, {sSU}, {L_SU}
          s_lshl_b32 {w3.sM}, {sW}, 13
          s_add_u32 {w3.sM}, {w3.sM}, {L_STG}
          s_mul_i32 {w3.sB}, {sJ}, 448
          s_lshl_b32 {sT[0]}, {sW}, 7
          s_add_u32 {w3.sB}, {w3.sB}, {sT[0]}
          s_lshl_b32 {sT[0]}, {k.sI}, 1
          s_add_u32 {sT[0]}, {sT[0]}, {sJ}
          s_lshl_b32 {sT[0]}, {sT[0]}, 1
          s_and_b32 {k.sRot}, {sT[0]}, {15 if ROT & 2 else 0}
          {w3.init(k.sRot)}
          s_lshl_b32 {sT[0]}, {sJ}, 16
          s_and_b32 {sT[0]}, {sT[0]}, {-1 if ROT & 1 else 0}
          s_add_u32 {k.sW2o}, {k.sWoff}, {sT[0]}
          v_add_u32 {w3.vA[0]}, {w3.sM}, {k.vTr}
          v_xor_b32 {w3.vA[1]}, 64, {w3.vA[0]}
          v_add_u32 {vSU[0]}, {sSU}, {k.vTr}
          v_xor_b32 {vSU[1]}, 64, {vSU[0]}''')

def kchains(k, t, side):
    a, v, s = k.a, k.v, k.s
    vL, sT, par = k.vL, k.sT, k.vPar
    z1 = v.alloc('z1', 2); z8 = v.alloc('z8', 2); z2 = v.alloc('z256', 2); z16 = v.alloc('z16', 2)
    g = v.alloc('g', 16); tm = v.alloc('tm', 6); e0 = v.alloc('e0', 2); e1 = v.alloc('e1', 2); pkr = v.alloc('pkr', 4, 1)
    k.sKinv = s.alloc('kinv')
    M = [f'v_lshlrev_b32 {par[q]}, 16, {par[q]}' for q in range(8)]
    M += L(f'''v_mul_f32 {t[0]}, {k.sL2}, {par[0]}
          v_mul_f32 {t[1]}, {k.sL2}, {par[4]}
          v_exp_f32 {t[0]}, {t[0]}
          v_exp_f32 {t[1]}, {t[1]}
          v_max3_f32 {t[3]}, |{par[2]}|, |{par[3]}|, |{par[6]}|
          v_cvt_pk_bf16_f32 {t[0]}, {t[0]}, {t[1]}
          v_max_f32 {t[3]}, |{par[7]}|, {t[3]}
          v_and_b32 {t[1]}, 0xffff0000, {t[0]}
          v_lshlrev_b32 {t[0]}, 16, {t[0]}
          v_mul_f32 {t[3]}, {t[3]}, {t[1]}
          v_mul_f32 {t[0]}, {t[0]}, {t[1]}
          v_mul_f32 {t[2]}, {par[1]}, {t[1]}
          v_max_f32_dpp {t[3]}, {t[3]}, {t[3]} row_shr:1 row_mask:0xf bank_mask:0xf
          v_mul_f32 {g[0]}, {par[2]}, {t[1]}
          v_mul_f32 {g[1]}, {par[3]}, {t[1]}
          v_max_f32_dpp {t[3]}, {t[3]}, {t[3]} row_shr:2 row_mask:0xf bank_mask:0xf
          v_mul_f32 {t[0]}, {fb(-1.4426950408889634)}, {t[0]}
          v_mul_f32 {t[2]}, 0.15915494, {t[2]}''')
    dpp = ['row_shr:4', 'row_shr:8', 'row_bcast:15', 'row_bcast:31']
    for z, p in ((z1, 1.0), (z8, 8.0), (z16, 16.0), (z2, 256.0)):
        sg = '-' if p in (8.0, 16.0) else ''
        M += L(f'''v_max_f32_dpp {t[3]}, {t[3]}, {t[3]} {dpp.pop(0)} row_mask:0xf bank_mask:0xf
              v_mul_f32 {t[4]}, {fb(p)}, {t[0]}
              v_mul_f32 {t[5]}, {fb(p)}, {t[2]}
              v_exp_f32 {t[4]}, {t[4]}
              v_fract_f32 {t[5]}, {t[5]}
              v_cos_f32 {z[0]}, {t[5]}
              v_sin_f32 {z[1]}, {t[5]}
              v_mul_f32 {z[0]}, {z[0]}, {t[4]}
              v_mul_f32 {z[1]}, {sg}{z[1]}, {t[4]}''')
    M += L(f'''v_readlane_b32 {sT[0]}, {t[3]}, 63
          v_mov_b32 {t[6]}, 0x3c00
          v_accvgpr_write_b32 {AG(KA + KG_E, 1)}, {t[6]}
          s_lshr_b32 {sT[0]}, {sT[0]}, 23
          s_max_u32 {sT[0]}, {sT[0]}, 20
          s_min_u32 {sT[0]}, {sT[0]}, 240
          s_sub_u32 {sT[1]}, 264, {sT[0]}
          s_lshl_b32 {sT[1]}, {sT[1]}, 23
          s_sub_u32 {sT[0]}, {sT[0]}, 9
          s_lshl_b32 {k.sKinv}, {sT[0]}, 23
          v_mul_f32 {g[0]}, {sT[1]}, {g[0]}
          v_mul_f32 {g[1]}, {sT[1]}, {g[1]}''')
    G = lambda b: g[2 * b:2 * b + 2]
    def out(row, x, n=3):
        r = pkr[n]
        return [f'v_cvt_pk_f16_f32 {r}, {x[0]}, {x[1]}', f'v_accvgpr_write_b32 {AG(KA + row, 1)}, {r}']
    def cm(d, x, y, tt):
        return [f'v_pk_mul_f32 {tt}, {x}, {y} op_sel:[0,0] op_sel_hi:[0,1]', f'v_pk_fma_f32 {d}, {x}, {y}, {tt} op_sel:[1,1,0] op_sel_hi:[1,0,1] neg_lo:[1,0,0]']
    M += out(KG_E + 1, z8, 0) + out(KG_E + 2, z16, 1) + out(0, G(0), 2)
    ech = [[], []]
    for c in range(3, 32):
        dst = e1 if c & 1 else e0
        src = (z8 if c == 3 else z16 if c == 4 else dst)
        ech[c & 1].append(cm(dst, src, z16, tm[2+2*(c&1):4+2*(c&1)]) + out(KG_E + c, dst, c & 1))
    gch = [cm(G(b), G(b - 1), z1, tm[0:2]) + out(b, G(b), 2) for b in range(1, 8)]
    for m in range(1, 9):
        bs = (0, 2, 4, 6) if m == 1 else (0, 4) if m < 4 else (0,)
        for b in bs:
            row = 8 + b // 2 if m == 1 else 12 + 2 * (m - 2) + b // 4 if m < 4 else 12 + m
            gch.append(cm(G(b), G(b), z2, tm[0:2]) + out(row, G(b), 2))
    ch = [ech[1], gch, ech[0]]
    while any(ch):
        cur = [c.pop(0) for c in ch if c]
        M += [i_ for pr in zip(*cur) for i_ in pr]
    weave(a, M, side, int(os.environ.get('W1E', 12)), int(os.environ.get('W1S', 0)))
    v.release(z1, z8, z2, z16, g, tm, e0, e1, pkr, par[0:4], par[6:8])

def p1(k):
    a, v, s = k.a, k.v, k.s
    vL, sT, sOnes = k.vL, k.sT, k.sOnes
    wt = k.wt
    BK = v.alloc('BK', 64); SQ = v.alloc('SQ', 4); X = v.alloc('X', 4); k.U8 = U8 = v.alloc('U8', 8)
    a(f'v_mov_b32 {SQ[0]}, 0\nv_mov_b32 {SQ[1]}, 0\nv_mov_b32 {SQ[2]}, 0\nv_mov_b32 {SQ[3]}, 0')
    a.wait_vm(k.utok); a.barrier()
    k.T()
    rd = [f'ds_read_b128 {BK[4*q:4*q+4]}, {k.vB[(2*q)&7]} offset:{(q>>2)*UKC}' for q in range(16)]
    main = rd[:6] + [f'ds_read_b128 {X}, {k.vXE[0]}']
    for q in range(16):
        for d in range(4):
            main += [f'v_dot2c_f32_bf16 {SQ[0]}, {sOnes}, {BK[4*q+d]}', f'v_dot2c_f32_bf16 {SQ[1]}, {BK[4*q+d]}, {BK[4*q+d]}']
        if q + 6 < 16: main.append(rd[q + 6])
        if q == 10: main += [f'ds_read_b64 {U8[2*jj:2*jj+2]}, {k.vUo[jj]}' for jj in range(4)]
        if q == 3:
            for d in range(4): main += [f'v_dot2c_f32_bf16 {SQ[2]}, {sOnes}, {X[d]}', f'v_dot2c_f32_bf16 {SQ[3]}, {X[d]}, {X[d]}']
        if q in (5, 6, 7, 8):
            sh = 1 << (q - 5)
            main += [f'v_add_f32_dpp {SQ[z]}, {SQ[z]}, {SQ[z]} row_shr:{sh} row_mask:0xf bank_mask:0xf bound_ctrl:0' for z in (2, 3)]
    zero = v.alloc('zero')
    side = [
                      f'v_mov_b32 {zero}, 0'] + ([] if FAST else [f'global_load_dwordx2 {k.vNonce}, {zero}, {k.kc[2:4]} sc1'])
    w3 = k.w3
    P1S = [int(x) for x in os.environ.get('P1S', '2,12,22').split(',') if x]
    if k.NP: side = w3.fill_items() + side
    weave(a, main, side, 11, 8)
    a(f's_mov_b64 exec, {k.sXM}\nds_write_b64 {k.vXE[1]}, {SQ[2:4]}\ns_mov_b64 exec, -1\nds_write_b64 {k.vSW}, {SQ[0:2]}')
    v.release(X, SQ, k.vXE, k.vSW, k.vUo); s.release(k.sXM)
    acc = v.alloc('acc1', 16); csa = v.alloc('csa', 4)
    DA = 6; Af = v.alloc('Af', 4 * DA); Bo = v.alloc('Bo', 12)
    a.wait_vm(wt[1]); a.barrier()
    k.T()
    tokA = {}
    def rdk(ks):
        q = ks % DA
        ad = k.vAo if ks & 1 else k.vAe
        if ks & 1: a(f'ds_read_b128 {Bo[4*((ks>>1)%3):4*((ks>>1)%3)+4]}, {k.vB[ks&7]} offset:{(ks>>3)*UKC}')
        a(f'ds_read_b64_tr_b16 {Af[4*q:4*q+2]}, {ad} offset:{ks*2048}')
        tokA[ks] = a(f'ds_read_b64_tr_b16 {Af[4*q+2:4*q+4]}, {ad} offset:{ks*2048+512}')
    sg = v.alloc('sg', 8); su = v.alloc('su', 8); k.XN = XN = v.alloc('acc', 16); xp = v.alloc('xp', 8)
    F = Fill(a)
    F.add([f'ds_read_b128 {sg[0:4]}, {k.vSG}', f'ds_read_b128 {sg[4:8]}, {k.vSG} offset:16', f'ds_read_b128 {su[0:4]}, {k.vSU}', f'ds_read_b128 {su[4:8]}, {k.vSU} offset:16'])
    F.add([f'v_lshlrev_b32 {XN[2*p]}, 16, {U8[p]}' for p in range(8)] + [f'v_and_b32 {XN[2*p+1]}, 0xffff0000, {U8[p]}' for p in range(8)])
    for x in (su, sg):
        F.add(L(f'''v_add_f32 {x[0]}, {x[0]}, {x[2]}
              v_add_f32 {x[1]}, {x[1]}, {x[3]}
              v_add_f32 {x[4]}, {x[4]}, {x[6]}
              v_add_f32 {x[5]}, {x[5]}, {x[7]}
              v_add_f32 {x[0]}, {x[0]}, {x[4]}
              v_add_f32 {x[1]}, {x[1]}, {x[5]}
              v_mul_f32 {x[0]}, {k.sI512}, {x[0]}
              v_mul_f32 {x[2]}, {x[0]}, {x[0]}
              v_fma_f32 {x[1]}, {x[1]}, {k.sI512}, -{x[2]}
              v_max_f32 {x[1]}, 0, {x[1]}
              v_add_f32 {x[2]}, {k.sEps}, {x[1]}
              v_rsq_f32 {x[2]}, {x[2]}'''))
    F.add(L(f'''v_mul_f32 {su[3]}, {su[0]}, {su[2]}
          v_mul_f32 {sg[3]}, {sg[2]}, {sg[2]}
          v_fma_f32 {sg[3]}, {sg[3]}, {sg[1]}, {k.sEps}
          v_rsq_f32 {sg[3]}, {sg[3]}
          v_sub_f32 {sg[0]}, 0, {sg[0]}
          v_mul_f32 {sg[2]}, {sg[2]}, {sg[3]}
          v_rcp_f32 {sg[1]}, {sg[2]}
          v_mul_f32 {sg[4]}, {k.sC0}, {sg[2]}
          v_mul_f32 {sg[5]}, {sg[2]}, {sg[2]}
          v_mul_f32 {sg[5]}, {sg[5]}, {sg[2]}
          v_mul_f32 {sg[5]}, {k.sC1}, {sg[5]}'''))
    F.add([f'v_fma_f32 {XN[p]}, {XN[p]}, {su[2]}, -{su[3]}' for p in range(16)])
    F.add([f'v_cvt_pk_bf16_f32 {xp[p]}, {XN[2*p]}, {XN[2*p+1]}' for p in range(8)])
    F.add([f'ds_write_b64 {k.vXW}, {xp[2*jj:2*jj+2]} offset:{16*jj}' for jj in range(4)])
    F.add([f'ds_read_b64_tr_b16 {xp[4*rho+2*io:4*rho+2*io+2]}, {k.vXR} offset:{72*(16*rho+4*io)}' for rho in range(2) for io in range(2)])
    F.add([f'ds_write_b128 {k.vXT}, {xp[4*rho:4*rho+4]} offset:{32*rho}' for rho in range(2)])
    dq = deque()
    for ks in range(DA - 1): rdk(ks)
    for ks in range(32):
        if ks == 16 - DA + 1:
            a.wait_vm(wt[3]); a.barrier(lg=False)
        if ks in (1, 9) and os.environ.get('T3'):
            a(f'''s_lshl_b32 {sT[0]}, {k.sY}, 2
                  s_add_u32 {sT[0]}, {sT[0]}, {k.sW}
                  s_mul_i32 {sT[0]}, {sT[0]}, {56 * 128}
                  s_add_u32 {sT[0]}, {sT[0]}, {7168 * 128 if ks == 9 else 0}
                  v_lshlrev_b32 {k.junk}, 7, {vL}
                  s_mov_b32 exec_hi, 0xffffff''')
            a.touch(f'buffer_load_dword {k.junk}, {k.junk}, {k.sW3}, {sT[0]} offen')
            a('s_mov_b32 exec_hi, -1')
        if ks == 17:
            a.barrier(lg=False); k.w2t = {}; k.w2side = w_dma_items(k, k.sW2, k.w2t, k.sW2o); dq.extend(k.w2side[:10])
        if ks == 20 and FAST: a(f'global_load_dwordx2 {k.vNonce}, {zero}, {k.kc[2:4]} sc1\nglobal_load_dword {k.vGw[1]}, {k.vGw[0]}, {k.kc[2:4]} offset:128 sc1')
        if ks in P1S: dq.extend((w3.cons_items() if w3.nc < w3.nf else []) + (w3.fill_items() if w3.nf < k.NP else []))
        if ks % 2 == 0: a.wait_lg(tokA[min(ks + 1, 31)])
        q = ks % DA
        B = Bo[4*((ks>>1)%3):4*((ks>>1)%3)+4] if ks & 1 else BK[2*ks:2*ks+4]
        a(f'v_mfma_f32_32x32x16_bf16 {acc}, {Af[4*q:4*q+4]}, {B}, {acc if ks else 0}')
        if ks + DA - 1 < 32: rdk(ks + DA - 1)
        if dq:
            x = dq.popleft(); put(a, x)
            if cost(x) == 4 and dq: put(a, dq.popleft())
            F.gap(2)
        else: F.gap(10)
        a(f'v_mfma_f32_16x16x32_bf16 {csa}, {Af[4*q:4*q+4]}, {k.B16}, {csa if ks else 0}')
        F.gap(8)
    F.flush()
    while dq: put(a, dq.popleft())
    k.T()
    v.release(BK, Bo, k.vB, k.vAe, k.vAo, k.vSG, k.vSU, k.vXW, k.vXR)
    cs = v.alloc('cs', 16); hp = v.alloc('hp', 8); xq = v.alloc('xq', 8); xa = v.alloc('xa')
    a(f's_mov_b32 exec_lo, 0x01010101\ns_mov_b32 exec_hi, 0x01010101\nds_write_b128 {k.vCW}, {csa}\ns_mov_b64 exec, -1')
    for jj in range(4): a(f'ds_read_b128 {cs[4*jj:4*jj+4]}, {k.vCR} offset:{32*jj}')
    a(f"""v_lshrrev_b32 {xa}, 3, {vL}
          v_and_b32 {xq[0]}, 3, {vL}
          v_lshlrev_b32 {xq[0]}, 4, {xq[0]}
          v_mul_u32_u24 {xa}, 80, {xa}
          v_bfe_u32 {xq[1]}, {vL}, 2, 1
          v_mul_u32_u24 {xq[1]}, {2 * XSW}, {xq[1]}
          s_mul_i32 {sT[4]}, {k.sA}, {16 * 80}
          s_mul_i32 {sT[3]}, {k.sB}, {XSW}
          s_add_u32 {sT[4]}, {sT[4]}, {sT[3]}
          s_add_u32 {sT[4]}, {sT[4]}, {L_XS}
          v_add_u32 {xa}, {xa}, {xq[1]}
          v_add3_u32 {xa}, {xa}, {xq[0]}, {sT[4]}""")
    ok = a.label_name('NK'); lp = a.label_name('NL')
    gw = FAST
    chk = f"""v_readfirstlane_b32 {k.sNonce[0]}, {k.vNonce[0]}
          v_readfirstlane_b32 {k.sNonce[1]}, {k.vNonce[1]}
          s_mov_b32 {sT[2]}, {k.sNonce[0]}""" if not gw else f"""v_readfirstlane_b32 {k.sNonce[0]}, {k.vNonce[0]}
          v_readfirstlane_b32 {sT[1]}, {k.vGw[1]}
          v_readfirstlane_b32 {k.sNonce[1]}, {k.vNonce[1]}
          s_and_b32 {sT[2]}, {sT[1]}, 0x88888888
          s_cmp_eq_u32 {sT[2]}, 0x88888888
          s_cselect_b32 {sT[2]}, {k.sNonce[0]}, 0"""
    a(chk + f'\ns_cmp_lg_u32 {sT[2]}, 0')
    a.raw(f's_cbranch_scc1 {ok}')
    a.raw(f's_mov_b32 {sT[0]}, 0')
    a.label(lp)
    for x in L(f"""global_load_dwordx2 {k.vNonce}, {zero}, {k.kc[2:4]} sc1
          {f'global_load_dword {k.vGw[1]}, {k.vGw[0]}, {k.kc[2:4]} offset:128 sc1' if gw else ''}
          s_add_u32 {sT[0]}, {sT[0]}, 1
          s_waitcnt vmcnt(0)
          {chk}
          s_cmp_gt_u32 {sT[0]}, 0x40000
          s_cbranch_scc1 {ok}
          s_cmp_eq_u32 {sT[2]}, 0
          s_cbranch_scc1 {lp}"""): a.raw(x)
    a.label(ok)
    if gw: a(f's_xor_b32 {k.sSlow}, {k.sSlow}, {sT[1]}'); v.release(k.vGw)
    a.barrier()
    k.T()
    a(f'ds_read_b128 {xq[0:4]}, {xa}\nds_read_b128 {xq[4:8]}, {xa} offset:{8 * 80}')
    side = k.w2side
    def xst(): k.xttok = a(f'buffer_store_dwordx4 {xq[4:8]}, {k.vL16}, {k.sWS}, {k.sXo} offen offset:1024 sc1')
    xs = [f'buffer_store_dwordx4 {xq[0:4]}, {k.vL16}, {k.sWS}, {k.sXo} offen sc1', (xst, 8)]
    ops = k.gelu_ops(acc, cs, (sg[0:2], 0), (sg[4:6], 0), (sg[4:6], 1), (sg[0:2], 1), hp, Af)
    h = len(ops) // 2
    weave(a, ops[:h], side[10:] + xs, 3)
    k.st(f'buffer_store_dwordx4 {hp[0:4]}, {k.vL16}, {k.sWS}, {k.sHo} offen')
    for x in ops[h:]: a(x)
    k.htok = k.st(f'buffer_store_dwordx4 {hp[4:8]}, {k.vL16}, {k.sWS}, {k.sHo} offen offset:1024')
    k.T()
    v.release(acc, csa, Af, sg, su, xp, cs, hp, zero, k.vXT, xq, xa); s.release(k.sXo, k.sW2o)

from phases_b import *
STEPS = [prologue, lambda k: None, p1, edge1, p2, edge2, p3, p4]
```

```python
from util import *

def edge1(k):
    a, v, s = k.a, k.v, k.s
    vL, sT, sA, sB, sW, sJ, sI = k.vL, k.sT, k.sA, k.sB, k.sW, k.sJ, k.sI
    w2t = k.w2t
    t = v.alloc('t', 8); k.e1t = t
    w3 = k.w3; NE = k.NE
    vKW = v.alloc('vKW', 4); vG = v.alloc('vG'); vE = v.alloc('vE')
    M = L(f"""s_mul_i32 {sT[2]}, {sB}, {KG_CH}
          s_lshl_b32 {sT[3]}, {sA}, 8
          s_add_u32 {sT[3]}, {sT[3]}, {sT[2]}
          v_lshl_add_u32 {vKW[0]}, {vL}, 2, {sT[3]}
          v_xor_b32 {vKW[1]}, 64, {vKW[0]}
          v_xor_b32 {vKW[2]}, 128, {vKW[0]}
          v_xor_b32 {vKW[3]}, 192, {vKW[0]}""")
    M += [f'ds_write2st64_b32 {vKW[r & 3]}, {AG(KA + 2*r, 1)}, {AG(KA + 2*r + 1, 1)} offset0:{4*r} offset1:{4*r+2}' for r in range(27)]
    M += L(f"""v_and_b32 {t[1]}, 15, {vL}
          v_lshrrev_b32 {t[2]}, 4, {vL}
          v_lshlrev_b32 {t[3]}, 9, {t[1]}
          v_lshl_add_u32 {t[3]}, {t[2]}, 4, {t[3]}
          v_add_u32 {t[3]}, {sT[2]}, {t[3]}
          v_lshlrev_b32 {t[4]}, 5, {t[1]}
          v_and_b32 {vG}, 192, {t[4]}
          v_add_u32 {vG}, {vG}, {t[3]}
          v_add_u32 {t[4]}, {(KG_E >> 1) << 6}, {t[4]}
          v_and_b32 {vE}, 192, {t[4]}
          s_lshl_b32 {sT[0]}, {sA}, 13
          v_add3_u32 {vE}, {vE}, {t[3]}, {sT[0]}
          s_lshl_b32 {sT[0]}, {sA}, 4
          v_add_u32 {t[1]}, {sT[0]}, {t[1]}
          s_mul_i32 {sT[1]}, {sB}, {KTS}
          s_add_u32 {sT[1]}, {sT[1]}, {L_KT}
          v_max_u32 {t[3]}, 1, {t[2]}
          v_sub_u32 {t[3]}, 6, {t[3]}
          v_lshlrev_b32 {t[3]}, {t[3]}, {t[1]}
          v_cmp_gt_u32 vcc, 32, {vL}
          v_lshlrev_b32 {t[4]}, 4, {t[2]}
          v_lshlrev_b32 {t[5]}, 9, {t[2]}
          v_cndmask_b32 {t[4]}, {t[5]}, {t[4]}, vcc
          v_add3_u32 {t[4]}, {t[4]}, {t[3]}, {sT[1]}
          v_lshl_add_u32 {t[6]}, {t[1]}, 2, {t[5]}
          v_add_u32 {t[6]}, {sT[1]}, {t[6]}
          v_cmp_gt_u32 vcc, 48, {vL}
          v_mov_b32 {t[5]}, 0x100
          s_lshl_b32 {sT[0]}, {sA}, 6
          v_cndmask_b32 {t[5]}, {t[5]}, 8, vcc
          v_add_u32 {t[5]}, {t[5]}, {t[4]}
          v_xor_b32 {t[0]}, {sT[0]}, {k.vTr}
          v_add_u32 {t[0]}, {L_W}, {t[0]}
          s_lshl_b32 {sT[4]}, {sJ}, 3
          s_add_u32 {sT[4]}, {sT[4]}, {k.sFr}""")
    while w3.nc < w3.nf: M += w3.cons_items()
    for x in M: put(a, x)
    a.wait_vm(k.htok); a.barrier(); k.flag_store(sT[4], True)
    a(f's_lshl_b32 {sT[4]}, {sI}, 3\ns_add_u32 {sT[4]}, {sT[4]}, {k.sFc}'); k.flag_store(sT[4])
    k.T()
    Kf = v.alloc('Kf', 48); D = v.alloc('D', 8); vK = v.alloc('vK', 6)
    for x in range(1, 4): a(f'v_xor_b32 {vK[2*x-2]}, {64*x}, {vG}\nv_xor_b32 {vK[2*x-1]}, {64*x}, {vE}')
    def krd(kk):
        o = 12 * (kk % 4); g_, e_ = (vG, vE) if kk & 3 == 0 else (vK[2*(kk&3)-2], vK[2*(kk&3)-1])
        a(f'ds_read_b128 {Kf[o:o+4]}, {e_} offset:{KG_E * KG_R + 256 * (kk >> 2)}')
        for tau in range(2): a(f'ds_read_b128 {Kf[o+4+4*tau:o+8+4*tau]}, {g_} offset:{16 * tau * KG_R + 256 * (kk >> 2)}')
    for kk in range(4): krd(kk)
    rest = deque()
    if NE > k.NP: rest.extend(w3.fill_items())
    for kk in range(8):
        o = 12 * (kk % 4)
        for tau in range(2):
            d = D[4*tau:4*tau+4]
            a(f'v_mfma_f32_16x16x32_f16 {d}, {Kf[o+4+4*tau:o+8+4*tau]}, {Kf[o:o+4]}, {d if kk else 0}')
            if rest: put(a, rest.popleft())
        if kk + 4 < 8: krd(kk + 4)
    k.vP8 = v.alloc('vP8'); k.vP32 = v.alloc('vP32')
    a(f"""v_min_u32 {k.vP8}, 7, {vL}
          v_lshlrev_b32 {k.vP8}, 3, {k.vP8}
          v_lshlrev_b32 {k.vP32}, 3, {k.vTt}
          v_mov_b32 {Kf[0]}, 0
          v_mov_b32 {Kf[1]}, 0
          v_mov_b32 {Kf[2]}, 0
          v_mov_b32 {Kf[3]}, 0
          v_mov_b32 {Kf[4]}, {L_UC}""")
    while rest: put(a, rest.popleft())
    k.PP = os.environ.get('PP', 'b2')
    if k.PP == 'e1': k.p1r = k.poll_issue(k.vP8, k.sFr)
    a(f"""s_mov_b64 exec, 1
          ds_write_b128 {Kf[4]}, {Kf[0:4]}
          ds_write_b128 {Kf[4]}, {Kf[0:4]} offset:{KTS}
          s_mov_b64 exec, -1""")
    for q in range(8): a(f'v_mul_f32 {D[q]}, {k.sKinv}, {D[q]}')
    a(f'ds_write_b64 {t[4]}, {D[0:2]}\nds_write_b64 {t[5]}, {D[2:4]}\ns_mov_b32 exec_hi, 0')
    for r in range(4): a(f'ds_write_b32 {t[6]}, {D[4+r]} offset:{2048+128*r}')
    a(f"""s_mov_b32 exec_hi, -1
          s_lshl_b32 {sT[1]}, {sB}, 15
          s_lshl_b32 {sT[2]}, {sA}, 12
          s_add_u32 {sT[1]}, {sT[1]}, {sT[2]}
          s_lshl_b32 {sT[2]}, {sI}, 16
          s_lshl_b32 {sT[3]}, {sB}, 15
          s_add_u32 {sT[2]}, {sT[2]}, {sT[3]}
          s_and_b32 {sT[5]}, {sJ}, {7 if ROT & 1 else 0}
          s_add_u32 {sT[5]}, {sT[5]}, {sA}
          s_lshl_b32 {sT[5]}, {sT[5]}, 12
          v_add_u32 {t[1]}, {sT[3]}, {k.vL16}""")
    v.release(Kf, D, vG, vE, vK, vKW); s.release(k.sKinv)
    a.wait_vm(w2t[3]); a.barrier()
    k.T()

def p2(k):
    a, v, s = k.a, k.v, k.s
    vL, sT, sA, sB, sW, sJ, sI = k.vL, k.sT, k.sA, k.sB, k.sW, k.sJ, k.sI
    t = k.e1t; w3 = k.w3
    NE = k.NE
    k.W2F = W2F = v.alloc('W2F', 128); V = v.alloc('V', 18, 1); vW2 = V[0]
    a(f'v_mov_b32 {vW2}, {t[0]}')
    rdl = [f'ds_read_b32 {V[9*ch+q]}, {k.GA[q]} offset:{ch * KTS}' for ch in range(2) for q in range(9)]
    for ks in range(32):
        rdl.append(f'ds_read_b64_tr_b16 {W2F[4*ks:4*ks+2]}, {vW2} offset:{ks*2048}')
        rdl.append(f'ds_read_b64_tr_b16 {W2F[4*ks+2:4*ks+4]}, {vW2} offset:{ks*2048+1024}')
    NR0 = int(os.environ.get('NR0', 16))
    for x in rdl[18:18+NR0]: a(x)
    side = []
    while w3.nf < NE: side += w3.cons_items() + w3.fill_items()
    NB = 5; P = v.alloc('P', 8); vCP = v.alloc('vCP', 2)
    cpw = []
    for ch in range(2):
        for mu in range(2):
            p = P[4*mu:4*mu+4]
            cpw += [f'v_cvt_pk_bf16_f32 {p[q]}, {V[9*ch+1-mu+2*q]}, {V[9*ch+2-mu+2*q]}' for q in range(4)]
            cpw.append(f'ds_write_b128 {vCP[0]}, {p} offset:{ch*2*CS + mu*CS}')
    k.cA = vA = v.alloc('cA'); k.cB = vB = v.alloc('cB'); k.cS = cS = v.alloc('cS'); vSt = v.alloc('vSt'); sSt = s.alloc('sSt'); sUC = s.alloc('sUC', 2)
    main = L(f'''v_lshrrev_b32 {t[2]}, 1, {vL}
          v_mul_u32_u24 {t[2]}, {CS}, {t[2]}
          v_and_b32 {t[3]}, 1, {vL}
          v_lshl_add_u32 {t[2]}, {t[3]}, 4, {t[2]}
          v_add_u32 {vCP[1]}, {L_CP + 4096}, {t[2]}
          v_lshlrev_b32 {t[0]}, 4, v0
          v_add_u32 {vCP[0]}, {L_CP}, {t[0]}
          v_mov_b32 {t[4]}, 0
          v_mov_b32 {t[5]}, 0
          v_mov_b32 {t[6]}, 0
          v_mov_b32 {t[7]}, 0''')
    main += L(f"""v_and_b32 {t[0]}, 1, {vL}
          v_mul_u32_u24 {t[0]}, {CS}, {t[0]}
          v_bfe_u32 {t[3]}, {vL}, 1, 3
          v_lshlrev_b32 {t[3]}, 2, {t[3]}
          v_sub_u32 {t[0]}, {t[0]}, {t[3]}
          v_lshrrev_b32 {t[2]}, 4, {vL}
          v_lshl_add_u32 {t[0]}, {t[2]}, 4, {t[0]}
          s_mul_i32 {sT[0]}, {sB}, {2 * CS}
          s_lshl_b32 {sT[4]}, {sA}, 8
          s_sub_u32 {sT[0]}, {sT[0]}, {sT[4]}
          s_add_u32 {sT[0]}, {sT[0]}, {L_CP + 28}
          v_add_u32 {vA}, {sT[0]}, {t[0]}
          v_and_b32 {t[3]}, 15, {vL}
          v_lshlrev_b32 {t[3]}, 5, {t[3]}
          v_lshl_add_u32 {t[0]}, {t[2]}, 4, {t[3]}
          s_mul_i32 {sUC[1]}, {sB}, {UCS}
          s_sub_u32 {sT[0]}, {sUC[1]}, {sT[4]}
          s_add_u32 {sT[0]}, {sT[0]}, {L_UC + UCP - 480}
          v_add_u32 {vB}, {sT[0]}, {t[0]}
          v_lshl_add_u32 {cS}, {t[2]}, 3, {t[3]}
          v_lshlrev_b32 {vSt}, 2, {vL}
          s_lshl_b32 {sSt}, {sI}, 13
          s_lshl_b32 {sT[0]}, {sJ}, 10
          s_add_u32 {sSt}, {sSt}, {sT[0]}
          s_lshl_b32 {sT[0]}, {sA}, 9
          s_add_u32 {sSt}, {sSt}, {sT[0]}
          s_lshl_b32 {sT[0]}, {sB}, 8
          s_add_u32 {sSt}, {sSt}, {sT[0]}
          s_add_u32 {sSt}, {sSt}, {WS_STAT}
          s_mul_i32 {sUC[0]}, {sJ}, {32 * XTT}
          s_and_b32 {sT[0]}, {k.sD}, 63
          s_lshl_b32 {sT[0]}, {sT[0]}, 7
          s_add_u32 {sUC[0]}, {sUC[0]}, {sT[0]}
          s_add_u32 {sUC[0]}, {sUC[0]}, {WS_XT}
          v_lshrrev_b32 {t[0]}, 3, {vL}
          v_mul_u32_u24 {t[0]}, {XTT}, {t[0]}
          v_and_b32 {t[3]}, 7, {vL}
          v_lshl_add_u32 {t[3]}, {t[3]}, 4, {t[0]}
          v_add_u32 {t[2]}, {L_UC}, {k.vL16}
          s_add_u32 {sT[3]}, {k.sHo}, {WS_X1}
          s_lshl_b32 {sT[4]}, {sJ}, 3
          s_add_u32 {sT[4]}, {sT[4]}, {k.sFr}
          s_add_u32 {sT[4]}, {sT[4]}, {F2}""")
    weave(a, main, rdl[18+NR0:], 1)
    if k.PP == 'b2': k.p1r = k.poll_issue(k.vP8, k.sFr, 'pollx')
    for x in side: put(a, x)
    a.barrier()
    if k.PP == 'b3': k.p1r = k.poll_issue(k.vP8, k.sFr, 'pollx')
    if FINE: k.T()
    for x in rdl[:18]: a(x)
    v.release(k.GA)
    k.poll_check(k.p1r)
    k.T()
    pc = k.poll_issue(k.vP32, k.sFc)
    toks = {}
    sH2 = s.alloc('sH2'); side = []
    for c in range(4):
        side.append((lambda c=c: a(f's_add_u32 m0, {sT[1]}, {c * 8192}\ns_add_u32 {sH2}, {sT[5]}, {c * 8192}\ns_and_b32 {sH2}, {sH2}, 0x7fff\ns_add_u32 {sH2}, {sH2}, {sT[2]}'), 16))
        for e in range(4):
            def f(c=c, e=e): toks[c] = a(f'buffer_load_dwordx4 {k.vL16}, {k.sWS}, {sH2} offen offset:{1024*e} lds')
            side.append((f, 8))
    NCP = int(os.environ.get('NCP', 20))
    for x in side[:10] + cpw[:NCP] + side[10:]: put(a, x)
    s.release(sH2)
    Bl = [v.alloc(f'Bf{q}', 4) for q in range(NB)]
    if FINE == '2': k.T()
    X = k.XN
    tok = {}
    def rd(ks): tok[ks] = a(f'ds_read_b128 {Bl[ks%NB]}, {t[1]} offset:{ks*1024}')
    F = Fill(a)
    a.wait_vm(toks[0]); a.barrier()
    k.T()
    F.add(cpw[NCP:])
    def cpz(): k.cptok = a(f's_mov_b64 exec, 0xff\nds_write_b128 {vCP[1]}, {t[4:8]}'); a('s_mov_b64 exec, -1')
    F.add([(cpz, 12)])
    F.add([(lambda: a(f's_mov_b32 exec_hi, 0x3fffffff\nds_write_b128 {t[2]}, {t[4:8]}\nds_write_b128 {t[2]}, {t[4:8]} offset:{UCS}\ns_mov_b32 exec_hi, -1'), 16)])
    for ks in range(NB - 1): rd(ks)
    UP = int(os.environ.get('UP', 1)); dq = deque()
    FA = [int(x) for x in os.environ.get('FA', '7,13').split(',') if x]
    CA = [int(x) for x in os.environ.get('CA', '19').split(',') if x]
    def ucd(e):
        k.uct = a(f'buffer_load_dwordx4 {t[3]}, {k.sWS}, {sUC[0]} offen offset:{1024*e} lds')
        if e < 3: a(f's_add_u32 {sUC[0]}, {sUC[0]}, {8 * XTT - 1024}')
    for ks in range(32):
        nx = ks + NB - 1
        if nx == 24: a.wait_lg(k.cptok)
        if nx < 32 and nx % 8 == 0:
            a.wait_vm(toks[nx // 8]); a.barrier(lg=False)
            if FINE == '2': k.T()
        if ks % 2 == 0: a.wait_lg(tok[ks + 1])
        a(f'v_mfma_f32_32x32x16_bf16 {X}, {k.W2F[4*ks:4*ks+4]}, {Bl[ks%NB]}, {X}')
        if nx < 32: rd(nx)
        if ks == UP:
            k.poll_check(pc)
            dq.extend([f's_add_u32 m0, {sUC[1]}, {L_UC + UCP}'] + [(lambda e=e: ucd(e), 8) for e in range(4)])
        if ks in FA: dq.extend(w3.fill_items())
        if ks in CA: dq.extend(w3.cons_items() + w3.fill_items())
        if dq:
            x = dq.popleft(); put(a, x)
            if cost(x) == 4 and dq: put(a, dq.popleft())
            F.gap(12)
        else: F.gap(20)
    v.release(k.W2F, V, P, vCP, *Bl)
    k.cs3a = v.alloc('cs3a', 8); k.ncs3 = 0
    F.flush()
    while dq: put(a, dq.popleft())
    k.T()
    xp = v.alloc('xp', 8); SQ = v.alloc('SQ', 2)
    a(f'v_mov_b32 {SQ[0]}, 0\nv_mov_b32 {SQ[1]}, 0')
    for q in range(4): a(f'v_cvt_pk_bf16_f32 {xp[q]}, {X[2*q]}, {X[2*q+1]}')
    k.st(f'buffer_store_dwordx4 {xp[0:4]}, {k.vL16}, {k.sWS}, {sT[3]} offen')
    for q in range(4, 8): a(f'v_cvt_pk_bf16_f32 {xp[q]}, {X[2*q]}, {X[2*q+1]}')
    k.st(f'buffer_store_dwordx4 {xp[4:8]}, {k.vL16}, {k.sWS}, {sT[3]} offen offset:1024')
    for q in range(8): a(f'v_dot2c_f32_bf16 {SQ[0]}, {k.sOnes}, {xp[q]}\nv_dot2c_f32_bf16 {SQ[1]}, {xp[q]}, {xp[q]}')
    a(f'v_permlane32_swap_b32 {SQ[0]}, {SQ[1]}\nv_add_f32 {SQ[0]}, {SQ[0]}, {SQ[1]}')
    k.x1tok = k.st(f'buffer_store_dword {SQ[0]}, {vSt}, {k.sWS}, {sSt} offen')
    k.T()
    v.release(xp, SQ, vSt); s.release(sSt, sUC)

def x1_start(k):
    a, v, s = k.a, k.v, k.s
    sT, sI = k.sT, k.sI
    sX1 = s.alloc('sX1', 3, 1)
    a(f"""s_lshl_b32 {sX1[0]}, {k.sRot}, 11
          s_add_u32 {sX1[0]}, {sX1[0]}, {k.sW12}
          s_and_b32 {sX1[0]}, {sX1[0]}, 0x7fff
          s_xor_b32 {sX1[1]}, {sX1[0]}, 0x4000
          s_lshl_b32 {sX1[2]}, {sI}, 16
          s_add_u32 {sX1[0]}, {sX1[0]}, {sX1[2]}
          s_add_u32 {sX1[1]}, {sX1[1]}, {sX1[2]}""")
    k.poll_check(k.p2r)
    k.T()
    toks = {}
    side = []
    for c in range(4):
        side.append((lambda c=c: a(f's_add_u32 m0, {k.sW12}, {c * 16384}\ns_add_u32 {sX1[2]}, {sX1[c & 1]}, {WS_X1 + (c >> 1) * 32768}'), 8))
        for e in range(4):
            def f(c=c, e=e): toks[c] = a(f'buffer_load_dwordx4 {k.vL16}, {k.sWS}, {sX1[2]} offen offset:{1024*e} lds')
            side.append((f, 8))
    def sd0(): a(f's_lshl_b32 {sX1[2]}, {k.sW}, 11\ns_add_u32 m0, {sX1[2]}, 49152\ns_lshl_b32 {sT[0]}, {sI}, 13\ns_add_u32 {sX1[2]}, {sX1[2]}, {sT[0]}\ns_add_u32 {sX1[2]}, {sX1[2]}, {WS_STAT}')
    def sd(e): toks['s'] = a(f'buffer_load_dwordx4 {k.vL16}, {k.sWS}, {sX1[2]} offen offset:{1024*e} lds')
    k.x1 = (toks, side, sX1)
    return side[:5] + [(sd0, 20), (lambda: sd(0), 8), (lambda: sd(1), 8)] + side[5:10]

def edge2(k):
    a, v, s = k.a, k.v, k.s
    vL, sT, sA, sB, sW, sJ, sI = k.vL, k.sT, k.sA, k.sB, k.sW, k.sJ, k.sI
    t = k.e1t; w3 = k.w3; vA, vB, cS = k.cA, k.cB, k.cS
    k.Y = Y = v.alloc('Y', 32); Af = v.alloc('cAf', 64); Bf = v.alloc('cBf', 64); vA3 = v.alloc('vA3', 3, 1)
    for q in range(3): a(f'v_add_u32 {vA3[q]}, {1024 * (q + 1)}, {vA}')
    def loads(rho):
        bu = rho & 1; r = 32 * rho; O = []
        for i in range(8):
            O.append(f'ds_read_b128 {Bf[32*bu+4*i:32*bu+4*i+4]}, {vB} offset:{2 * (256 * i + 224 - r)}')
            d = Af[32*bu+4*i:32*bu+4*i+4]; o = 2 * (2016 - 256 * i - r)
            ad = vA if o < 1024 else vA3[(o >> 10) - 1]; o = (o & 1023) >> 2
            O += [f'ds_read2_b32 {d[0:2]}, {ad} offset0:{o} offset1:{o+1}', f'ds_read2_b32 {d[2:4]}, {ad} offset0:{o+2} offset1:{o+3}']
        return O
    XC = os.environ.get('XC', '')
    if 'n' in XC: loads = lambda rho: []
    a.wait_vm(k.uct)
    if FINE: k.T()
    for x in loads(0): a(x)
    first = set()
    CF = int(os.environ.get('CF', 32))
    CC = int(os.environ.get('CC', 108))
    CP_ = int(os.environ.get('CPI', 80))
    st = deque(cs3_items(k, 2 * w3.nc))
    CSS = [int(x) for x in os.environ.get('CSS', '8,24,40,56,72,88,124,136').split(',') if x]
    def more():
        n0 = w3.nc
        if w3.nc < 16: st.extend(w3.cons_items())
        if w3.nf < 16: st.extend(w3.fill_items())
        st.extend(cs3_items(k, 2 * n0))
    nm = 0
    for rho in range(4):
        bu = rho & 1
        nxt = deque(loads(rho + 1) if rho < 3 else [])
        mm = sorted([(i, nt) for nt in range(8) for i in range(nt + 1)], key=lambda x: (max(x[0], x[1] - x[0]), x[1]))
        for n_, (i, nt) in enumerate(mm):
            y = Y[4*nt:4*nt+4]; de = nt - i
            if 'm' not in XC or nt not in first: a(f'v_mfma_f32_16x16x32_bf16 {y}, {Af[32*bu+4*i:32*bu+4*i+4]}, {Bf[32*bu+4*de:32*bu+4*de+4]}, {y if nt in first else 0}')
            first.add(nt)
            if nm in CSS: more()
            if nxt and (n_ % 3 != 2 or not st): a(nxt.popleft())
            else:
                for _ in range(2):
                    if st: put(a, st.popleft())
            nm += 1
            if nm == CF:
                a.wait_vm(k.x1tok); a.barrier(lg=False); k.flag_store(sT[4], True)
                k.T()
            if nm == CP_:
                a(f's_add_u32 {sT[4]}, {k.sFr}, {F2}')
                k.p2r = k.poll_issue(k.vP8, sT[4])
            if nm == CC:
                while st: put(a, st.popleft())
                st.extend(x1_start(k))
        assert not nxt
    for _ in range(int(os.environ.get('NX', 1))): more()
    while st: put(a, st.popleft())
    v.release(Af, Bf, vA3)
    k.T()

def p3(k):
    a, v, s = k.a, k.v, k.s
    vL, sT, sA, sB, sW, sJ, sI = k.vL, k.sT, k.sA, k.sB, k.sW, k.sJ, k.sI
    t = k.e1t; w3 = k.w3; Y = k.Y; cS = k.cS
    toks, side, sX1 = k.x1
    xu = v.alloc('xu', 8); w = v.alloc('w', 16); KP = v.alloc('KP', 16); vEX = v.alloc('vEX', 3); sST = s.alloc('sST')
    a(f"""s_mul_i32 {sT[0]}, {sB}, {UCS}
          s_lshl_b32 {sT[1]}, {sA}, 11
          s_add_u32 {sT[0]}, {sT[0]}, {sT[1]}
          s_add_u32 {sT[0]}, {sT[0]}, {L_UC + UCP}
          v_add_u32 {t[0]}, {sT[0]}, {cS}""")
    for q in range(4): a(f'ds_read_b64 {xu[2*q:2*q+2]}, {t[0]} offset:{512 * q}')
    main = L(f"""s_mul_i32 {sST}, {k.sD}, {XTS}
          s_add_u32 {sST}, {sST}, {sT[1]}
          s_add_u32 {sST}, {sST}, {WS_ST}
          v_add_u32 {vEX[0]}, {w3.sM}, {k.vL16}
          s_xor_b32 {sT[0]}, {sW}, 1
          s_lshl_b32 {sT[0]}, {sT[0]}, 13
          s_add_u32 {sT[0]}, {sT[0]}, {L_STG}
          v_add_u32 {vEX[1]}, {sT[0]}, {k.vL16}
          v_add_u32 {vEX[2]}, {w3.sM}, {cS}
          s_cmp_eq_u32 {sA}, 0
          s_cselect_b64 vcc, -1, 0""")
    for q in range(16): main += [f'v_cndmask_b32 {KP[q]}, {Y[16+q]}, {Y[q]}, vcc', f'v_cndmask_b32 {Y[q]}, {Y[q]}, {Y[16+q]}, vcc']
    for q in range(8): main += [f'v_lshlrev_b32 {w[2*q]}, 16, {xu[q]}', f'v_and_b32 {w[2*q+1]}, 0xffff0000, {xu[q]}']
    for q in range(8): main.append(f'v_pk_fma_f32 {KP[2*q:2*q+2]}, {w[2*q:2*q+2]}, {k.vPar[4:6]}, {KP[2*q:2*q+2]} op_sel:[0,1,0] op_sel_hi:[1,1,1]')
    for x in glue(main): put(a, x)
    v.release(w, k.cA, k.cB, cS, k.vPar[4:6], Y[16:32])
    main = []
    while w3.nc < 16:
        n0 = w3.nc
        main += w3.cons_items()
        if w3.nf < 16: main += w3.fill_items()
        elif side[10]: main += side[10:15]; side[10] = None
        main += cs3_items(k, 2 * n0)
    if side[10]: main += side[10:15]
    for x in main: put(a, x)
    if FINE: k.T()
    for x in cs3_items(k, 32): a(x)
    for q in range(4): a(f'ds_write_b128 {vEX[0]}, {Y[4*q:4*q+4]}  offset:{1024*q}')
    w3.free(); v.release(k.vW3, k.w3x[1]); s.release(k.w3x[0])
    k.w4 = w4 = Stream(k, k.sW4, k.vWd, 14, 5, 1024, lambda q, ph: AG(8 * q + 4 * ph, 4))
    sH3 = s.alloc('h3o'); vS1 = v.alloc('vS1')
    AC = v.alloc('AC', 8); BM = v.alloc('BM', 8)
    a(f'''s_mov_b32 exec_lo, 0x01010101
          s_mov_b32 exec_hi, 0x01010101
          ds_write_b128 {k.vCW}, {k.cs3a[0:4]}
          ds_write_b128 {k.vCW}, {k.cs3a[4:8]} offset:128
          s_mov_b64 exec, -1
          s_lshl_b32 {sT[0]}, {sW}, 8
          s_add_u32 {sT[0]}, {sT[0]}, {L_CSX}
          v_lshl_add_u32 {t[1]}, {k.vTt}, 2, {sT[0]}
          ds_read_b32 {t[2]}, {t[1]}
          ds_read_b32 {t[3]}, {t[1]} offset:128
          s_mul_i32 {w4.sM}, {sW}, 20480
          s_add_u32 {w4.sM}, {w4.sM}, {L_W4}
          s_mul_i32 {w4.sB}, {sW}, {448 * 1024}
          s_lshl_b32 {sT[0]}, {sJ}, 7
          s_add_u32 {w4.sB}, {w4.sB}, {sT[0]}
          s_and_b32 {sT[0]}, {sI}, 3
          s_lshl_b32 {sT[0]}, {sT[0]}, 1
          s_add_u32 {sT[0]}, {sT[0]}, {sJ}
          s_mul_i32 {sT[0]}, {sT[0]}, 7
          s_lshr_b32 {sT[0]}, {sT[0]}, 2
          s_cmp_ge_u32 {sT[0]}, 14
          s_cselect_b32 {k.sRot}, 14, 0
          s_sub_u32 {k.sRot}, {sT[0]}, {k.sRot}
          s_and_b32 {k.sRot}, {k.sRot}, {15 if ROT & 4 else 0}
          {w4.init(k.sRot)}
          s_lshl_b32 {sT[0]}, {sA}, 6
          v_xor_b32 {k.vTr}, {sT[0]}, {k.vTr}
          v_add_u32 {w4.vA[0]}, {w4.sM}, {k.vTr}
          v_xor_b32 {w4.vA[1]}, 64, {w4.vA[0]}
          s_mul_i32 {sH3}, {sI}, 229376
          s_mul_i32 {sT[0]}, {sJ}, 14336
          s_add_u32 {sH3}, {sH3}, {sT[0]}
          s_add_u32 {sH3}, {sH3}, {k.sW12}
          s_add_u32 {sH3}, {sH3}, {WS_H3}
          s_cmp_eq_u32 {sW}, 3
          s_cselect_b32 {sT[0]}, {hex(OOB)}, 0
          v_or_b32 {vS1}, {sT[0]}, {k.vL16}
          v_lshlrev_b32 {t[0]}, 2, {vL}
          v_add_u32 {t[0]}, 49152, {t[0]}
          s_lshl_b32 {sT[5]}, {sI}, 3
          s_add_u32 {sT[5]}, {sT[5]}, {k.sFc}
          s_add_u32 {sT[5]}, {sT[5]}, {FC - F1C}''')
    for ph in range(2):
        c_ = t[2 + ph]; A_ = AC[4*ph:4*ph+4]
        a(f'''v_cvt_pk_bf16_f32 {A_[0]}, {c_}, {c_}
              v_mov_b32 {A_[2]}, 0
              v_and_b32 {t[4]}, 0xffff0000, {A_[0]}
              v_mov_b32 {A_[3]}, 0
              v_sub_f32 {t[4]}, {c_}, {t[4]}
              v_mov_b32 {BM[4*ph+2]}, 0
              v_cvt_pk_bf16_f32 {A_[1]}, {t[4]}, 0
              v_mov_b32 {BM[4*ph+3]}, 0''')
    v.release(k.cs3a, k.vCW, k.vCR, k.B16)
    NB = 8
    acc = [v.alloc('acc0', 16), v.alloc('acc1', 16)]
    Bf = v.alloc('Bf', 4 * NB); tmp = v.alloc('tmp', 8); hp = v.alloc('hp', 8)
    st = v.alloc('st', 32); cI = v.alloc('cI', 2); c0 = v.alloc('c0', 2); c1 = v.alloc('c1', 2); cL = v.alloc('cL', 2)
    a.wait_vm(toks['s']); a.barrier()
    k.T()
    def stats_ops():
        O = [f'ds_read2st64_b32 {st[2*q:2*q+2]}, {t[0]} offset0:{2*q} offset1:{2*q+1}' for q in range(16)]
        n = 32
        while n > 2:
            O += [f'v_add_f32 {st[q]}, {st[q]}, {st[q+n//2]}' for q in range(n // 2)]
            n //= 2
        S, Q = st[0:2], st[2:4]
        O += [f'v_mov_b32 {Q[0]}, {S[0]}', f'v_mov_b32 {Q[1]}, {S[1]}', f'v_cmp_gt_u32 vcc, 32, {vL}',
              f'v_permlane32_swap_b32 {S[0]}, {Q[0]}', f'v_permlane32_swap_b32 {S[1]}, {Q[1]}']
        P_ = []
        for b in range(2):
            B_ = BM[4*b:4*b+4]
            P_.append(L(f'''v_mul_f32 {S[b]}, {k.sI512}, {S[b]}
                  v_mul_f32 {st[4+b]}, {S[b]}, {S[b]}
                  v_fma_f32 {Q[b]}, {Q[b]}, {k.sI512}, -{st[4+b]}
                  v_cndmask_b32 {S[b]}, 0, -{S[b]}, vcc
                  v_max_f32 {Q[b]}, 0, {Q[b]}
                  v_cvt_pk_bf16_f32 {B_[1]}, {S[b]}, 0
                  v_add_f32 {Q[b]}, {k.sEps}, {Q[b]}
                  v_lshlrev_b32 {st[8+b]}, 16, {B_[1]}
                  v_rsq_f32 {st[4+b]}, {Q[b]}
                  v_sub_f32 {st[8+b]}, {S[b]}, {st[8+b]}
                  v_log_f32 {cL[b]}, {Q[b]}
                  v_cvt_pk_bf16_f32 {B_[0]}, {S[b]}, {st[8+b]}
                  v_mul_f32 {cI[b]}, {Q[b]}, {st[4+b]}
                  v_mul_f32 {c0[b]}, {k.sC0}, {st[4+b]}
                  v_mul_f32 {st[6+b]}, {st[4+b]}, {st[4+b]}
                  v_mul_f32 {cL[b]}, 0.5, {cL[b]}
                  v_mul_f32 {st[6+b]}, {st[6+b]}, {st[4+b]}
                  v_mul_f32 {c1[b]}, {k.sC1}, {st[6+b]}'''))
        return O + [x for pr in zip(*P_) for x in pr]
    htok = {}
    def store(ps, hf):
        ph, tb = ps >> 1, ps & 1
        def f(): htok[0] = k.st(f'buffer_store_dwordx4 {hp[4*hf:4*hf+4]}, {vS1 if ph else k.vL16}, {k.sWS}, {sT[3]} offen offset:{2048*ph+1024*hf}')
        return ([f's_add_u32 {sT[3]}, {sH3}, {tb * 114688}'] if hf == 0 else []) + [(f, 16)]
    def epi_ops(ps):
        tb = ps & 1; x = acc[ps & 1]; O = []
        for g in range(4):
            E = range(4*g, 4*g+4); w = lambda e: tmp[e & 7]
            O += [f'v_mul_f32 {w(e)}, {x[e]}, {x[e]}' for e in E]
            O += [f'v_fma_f32 {w(e)}, {w(e)}, {c1[tb]}, {c0[tb]}' for e in E]
            O += [f'v_fma_f32 {w(e)}, {w(e)}, {x[e]}, {cL[tb]}' for e in E]
            O += [f'v_exp_f32 {w(e)}, {w(e)}' for e in E]
            O += [f'v_add_f32 {w(e)}, {w(e)}, {cI[tb]}' for e in E]
            O += [f'v_rcp_f32 {w(e)}, {w(e)}' for e in E]
            O += [f'v_mul_f32 {w(e)}, {w(e)}, {x[e]}' for e in E]
            O += [f'v_cvt_pk_bf16_f32 {hp[e//2]}, {w(e)}, {w(e+1)}' for e in E[::2]]
            if g & 1: O += store(ps, g >> 1)
        return O
    def epi_pk(ps):
        tb = ps & 1; x = acc[ps & 1]; O = []
        for g in range(2):
            P = range(4*g, 4*g+4); T_ = lambda p: x[2*p:2*p+2]; w = lambda p: tmp[2*(p&3):2*(p&3)+2]
            O += [f'v_pk_mul_f32 {w(p)}, {T_(p)}, {T_(p)}' for p in P]
            O += [f'v_pk_fma_f32 {w(p)}, {w(p)}, {c1}, {c0} op_sel:[0,{tb},{tb}] op_sel_hi:[1,{tb},{tb}]' for p in P]
            O += [f'v_pk_fma_f32 {w(p)}, {w(p)}, {T_(p)}, {cL} op_sel:[0,0,{tb}] op_sel_hi:[1,1,{tb}]' for p in P]
            O += [f'v_exp_f32 {w(p)[z]}, {w(p)[z]}' for p in P for z in range(2)]
            O += [f'v_pk_add_f32 {w(p)}, {w(p)}, {cI} op_sel:[0,{tb}] op_sel_hi:[1,{tb}]' for p in P]
            O += [f'v_rcp_f32 {w(p)[z]}, {w(p)[z]}' for p in P for z in range(2)]
            O += [f'v_pk_mul_f32 {w(p)}, {w(p)}, {T_(p)}' for p in P]
            O += [f'v_cvt_pk_bf16_f32 {hp[p]}, {w(p)[0]}, {w(p)[1]}' for p in P]
            O += store(ps, g)
        return O
    tok = {}
    def rd(n):
        ps, ks = n >> 5, n & 31
        tok[n] = a(f'ds_read_b128 {Bf[4*(n%NB):4*(n%NB)+4]}, {k.vL16} offset:{(ps&1)*32768 + ks*1024}')
    F = Fill(a)
    for n in range(NB - 1): rd(n)
    so = stats_ops(); mk = {}
    def mark(n_, x): return (lambda: mk.__setitem__(n_, a(x)), 4)
    F.add(so[:15] + [mark('s', so[15])])
    F.add([f'ds_read_b128 {Y[4*q:4*q+4]}, {vEX[1]} offset:{1024*q}' for q in range(4)])
    F.add([f'v_add_f32 {KP[q]}, {KP[q]}, {Y[q]}' for q in range(16)])
    F.add([f'v_cvt_pk_bf16_f32 {xu[q]}, {KP[2*q]}, {KP[2*q+1]}' for q in range(8)])
    F.add([f'ds_write_b64 {vEX[2]}, {xu[2*q:2*q+2]} offset:{4096 + 512*q}' for q in range(4)])
    F.add([mark('x', f'ds_read_b128 {xu[4*q:4*q+4]}, {vEX[0]} offset:{4096 + 1024*q}') for q in range(2)])
    F.add([f'buffer_store_dwordx4 {xu[4*q:4*q+4]}, {k.vL16}, {k.sWS}, {sST} offen offset:{1024*q} sc1' for q in range(2)])
    for n in range(128):
        ps, ks = n >> 5, n & 31
        ph, tb = ps >> 1, ps & 1
        nx = n + NB - 1
        used = 4
        if nx in (16, 32, 48):
            if nx < 48: a.wait_lg(mk['s' if nx == 16 else 'x'])
            a.wait_vm(toks[nx // 16]); a.barrier(lg=False); used += 8
            if FINE == '2': k.T()
            if nx == 16: F.q.extendleft(reversed(side[15:20])); F.add(so[16:])
            if nx == 32: F.add(w4.fill_items())
        if n % 4 == 0: a.wait_lg(tok[min(n + 3, 127)]); used += 4
        x = acc[ps & 1]
        a(f'v_mfma_f32_32x32x16_bf16 {x}, {AG(128*ph+4*ks, 4)}, {Bf[4*(n%NB):4*(n%NB)+4]}, {x if ks else 0}')
        if nx < 128: rd(nx)
        if ks == 31:
            if ps == 0: F.flush()
            a(f'v_mfma_f32_32x32x16_bf16 {x}, {AC[4*ph:4*ph+4]}, {BM[4*tb:4*tb+4]}, {x}')
            F.flush()
            k.T()
        if ks == 2 and ps >= 1:
            XP = os.environ.get('XP', '')
            eo = epi_ops(ps - 1)
            if 'e' in XP: eo = [x for x in eo if isinstance(x, tuple)]
            if 't' in XP: eo = [x.replace('v_exp_f32', 'v_mov_b32').replace('v_rcp_f32', 'v_mov_b32') if isinstance(x, str) else x for x in eo]
            if 's' in XP: eo = [x for x in eo if not isinstance(x, tuple)]
            if 'h' in XP: eo = [x for n_, x in enumerate(eo) if isinstance(x, tuple) or n_ % 2]
            F.add(eo)
            F.add(w4.fill_items())
            if ps == 2: F.add(w4.fill_items())
        F.gap(int(os.environ.get('G3', 24)) - used)
    v.release(Bf, st, AC, BM)
    for x in epi_pk(3): put(a, x)
    sB4 = s.alloc('sB4'); vB4a = v.alloc('vB4a', 2)
    a(f'''s_lshl_b32 {sT[0]}, {sJ}, 3
          s_add_u32 {sT[0]}, {sT[0]}, {k.sFr}
          s_add_u32 {sT[0]}, {sT[0]}, {F3}
          s_lshl_b32 {sB4}, {sW}, 14
          v_add_u32 {vB4a[0]}, {sB4}, {k.vTr}
          v_xor_b32 {vB4a[1]}, 64, {vB4a[0]}''')
    w4.slot = lambda q: (w4.sM, w4.vA, (q % 5) * 4096) if q < 10 else (sB4, vB4a, (q - 10) * 4096)
    w4.reuse = lambda q: q - 5 if q < 10 else -1
    for x in w4.cons_items() + w4.cons_items(): put(a, x)
    for q in range(3):
        for x in w4.fill_items() + w4.cons_items(): put(a, x)
    for x in w4.fill_items() + w4.fill_items(): put(a, x)
    a.wait_vm(htok[0])
    a.barrier()
    k.flag_store(sT[0], True)
    k.flag_store(sT[5])
    k.T()
    v.release(acc[0], acc[1], tmp, hp, cI, c0, c1, cL, vS1, xu, KP, vEX, Y[0:16]); s.release(sH3, sST, sX1)

def p4(k):
    a, v, s = k.a, k.v, k.s
    vL, sT, sA, sB, sW, sJ, sI = k.vL, k.sT, k.sA, k.sB, k.sW, k.sJ, k.sI
    t = k.e1t; w4 = k.w4
    vB = v.alloc('vB4', 2); vSD = v.alloc('vSD', 2); sSD = s.alloc('sSD', 2); sH = s.alloc('sH', 2); vO = v.alloc('vO'); vSR = v.alloc('vSR'); vRW = v.alloc('vRW'); vRR = v.alloc('vRR', 3)
    side = w4.fill_items() + w4.fill_items() + w4.fill_items() + w4.fill_items()
    main = L(f'''v_lshrrev_b32 {t[0]}, 3, {vL}
          v_mul_u32_u24 {t[0]}, {XTS}, {t[0]}
          v_and_b32 {t[1]}, 7, {vL}
          v_lshl_add_u32 {vSD[0]}, {t[1]}, 4, {t[0]}
          v_add_u32 {vSD[1]}, {8 * XTS - 1024}, {vSD[0]}
          s_lshl_b32 {sSD[0]}, {sJ}, 2
          s_add_u32 {sSD[0]}, {sSD[0]}, {sW}
          s_mul_i32 {sSD[0]}, {sSD[0]}, {16 * XTS}
          s_lshl_b32 {sT[1]}, {sI}, 7
          s_add_u32 {sSD[0]}, {sSD[0]}, {sT[1]}
          s_add_u32 {sSD[0]}, {sSD[0]}, {WS_ST}
          s_lshl_b32 {sSD[1]}, {sW}, 11
          v_and_b32 {t[2]}, 1, {vL}
          v_lshlrev_b32 {t[2]}, 3, {t[2]}
          s_lshl_b32 {sT[4]}, {sW}, 4
          s_add_u32 {sT[4]}, {sT[4]}, {k.sFr}
          s_add_u32 {sT[4]}, {sT[4]}, {F3}
          s_mul_i32 {sT[0]}, {sB}, 114688
          s_sub_u32 {sT[1]}, 114688, {sT[0]}
          v_add_u32 {vB[0]}, {sT[0]}, {k.vL16}
          v_add_u32 {vB[1]}, {sT[1]}, {k.vL16}
          s_mul_i32 {sT[2]}, {sI}, 229376
          s_mul_i32 {sT[3]}, {sW}, 28672
          s_add_u32 {sT[2]}, {sT[2]}, {sT[3]}
          s_add_u32 {sT[2]}, {sT[2]}, {WS_H3}
          s_lshl_b32 {sH[0]}, {k.sRot}, 11
          s_add_u32 {sH[0]}, {sH[0]}, {sT[2]}
          s_add_u32 {sH[1]}, {sT[2]}, 28672
          v_add_u32 {vRW}, {w4.sM}, {k.vL16}
          v_bfe_u32 {t[4]}, {vL}, 2, 2
          v_lshl_add_u32 {t[4]}, {k.vH}, 2, {t[4]}
          v_lshlrev_b32 {t[4]}, 7, {t[4]}
          v_bfe_u32 {t[5]}, {vL}, 4, 1
          v_lshl_add_u32 {t[4]}, {t[5]}, 5, {t[4]}
          v_and_b32 {t[5]}, 3, {vL}
          v_lshl_add_u32 {t[4]}, {t[5]}, 3, {t[4]}
          s_lshl_b32 {sT[0]}, {sA}, 12
          s_lshl_b32 {sT[1]}, {sB}, 6
          s_add_u32 {sT[0]}, {sT[0]}, {sT[1]}
          s_add_u32 {sT[0]}, {sT[0]}, {L_ST2}
          v_add_u32 {vSR}, {sT[0]}, {t[4]}
          v_lshlrev_b32 {t[5]}, 10, {k.vTt}
          v_lshl_add_u32 {t[5]}, {k.vH}, 4, {t[5]}
          s_lshl_b32 {sT[0]}, {sI}, 16
          s_lshl_b32 {sT[1]}, {sB}, 15
          s_add_u32 {sT[0]}, {sT[0]}, {sT[1]}
          s_lshl_b32 {sT[1]}, {sJ}, 7
          s_add_u32 {sT[0]}, {sT[0]}, {sT[1]}
          s_lshl_b32 {sT[1]}, {sA}, 6
          s_add_u32 {sT[0]}, {sT[0]}, {sT[1]}
          v_add_u32 {vO}, {sT[0]}, {t[5]}
          s_add_u32 {sT[5]}, {k.sFc}, {FC - F1C}''')
    for x in range(1, 4):
        main += L(f's_xor_b32 {sT[0]}, {sW}, {x}\ns_mul_i32 {sT[0]}, {sT[0]}, 20480\ns_add_u32 {sT[0]}, {sT[0]}, {L_W4 + (x-1)*4096}\nv_add_u32 {vRR[x-1]}, {sT[0]}, {k.vL16}')
    weave(a, main, side, 3)
    pc = k.poll_issue(k.vP32, sT[5])
    p = k.poll_issue(t[2], sT[4])
    acc = v.alloc('acc4', 64)
    NR = int(os.environ.get('NR', 13))
    Bq = v.alloc('Bq', 8 * NR)
    k.T()
    k.poll_check(p)
    k.T()
    def ld(q):
        O = [f's_add_u32 {sH[0]}, {sH[0]}, 2048', f's_cmp_eq_u32 {sH[0]}, {sH[1]}', f's_cselect_b32 {sH[0]}, {sT[2]}, {sH[0]}'] if q % 2 == 0 and q else []
        for tt in range(2):
            o = 8 * (q % NR) + 4 * tt
            O.append(f'buffer_load_dwordx4 {Bq[o:o+4]}, {vB[tt]}, {k.sWS}, {sH[0]} offen offset:{(q % 2) * 1024}')
        return O
    for q in range(NR):
        for x in ld(q): a(x)
        if q == 5:
            k.poll_check(pc)
            a(f's_add_u32 m0, {sSD[1]}, {L_ST2}\ns_nop 0')
            a(f'buffer_load_dwordx4 {vSD[0]}, {k.sWS}, {sSD[0]} offen lds')
            a(f'buffer_load_dwordx4 {vSD[1]}, {k.sWS}, {sSD[0]} offen offset:1024 lds')
    F = Fill(a)
    while w4.nc < 14: F.add(w4.cons_items())
    for q in range(28):
        for tt in range(2):
            o = 8 * (q % NR) + 4 * tt
            for de in range(2):
                x = acc[16*(de+2*tt):16*(de+2*tt)+16]
                a(f'v_mfma_f32_32x32x16_bf16 {x}, {AG(8*q+4*de, 4)}, {Bq[o:o+4]}, {x if q else 0}')
                if (tt, de) == (1, 1) and q + NR < 28:
                    for y in ld(q + NR): a(y)
                else: F.gap(12)
        if q == 0: k.T()
    assert not F.q
    v.release(Bq, vB)
    k.T()
    for x in range(1, 4):
        for q in range(4): a(f'ds_write_b128 {vRW}, {acc[16*x+4*q:16*x+4*q+4]} offset:{(x-1)*4096 + q*1024}')
    X = k.XN
    for q in range(8): a(f'v_pk_add_f32 {X[2*q:2*q+2]}, {X[2*q:2*q+2]}, {acc[2*q:2*q+2]}')
    U_ = v.alloc('U_', 16)
    for q in range(8): a(f'v_lshlrev_b32 {U_[2*q]}, 16, {k.U8[q]}\nv_and_b32 {U_[2*q+1]}, 0xffff0000, {k.U8[q]}')
    sNL = s.alloc('nl2', 2); a(f's_mov_b32 {sNL[0]}, {fb(-1.4426950408889634)}')
    a.wait_all()
    a.barrier()
    k.T()
    sv = v.alloc('sv', 8)
    for x in range(1, 4):
        for q in range(4): a(f'ds_read_b128 {acc[16*x+4*q:16*x+4*q+4]}, {vRR[x-1]} offset:{q*1024}')
    for q in range(4): a(f'ds_read_b64_tr_b16 {sv[2*q:2*q+2]}, {vSR} offset:{1024*q}')
    for x in range(1, 4):
        for q in range(8): a(f'v_pk_add_f32 {X[2*q:2*q+2]}, {X[2*q:2*q+2]}, {acc[16*x+2*q:16*x+2*q+2]}')
    E = acc[0:16]; S_ = acc[16:32]
    for hf in range(2):
        Q = range(4*hf, 4*hf+4)
        for q in Q: a(f'v_pk_mul_f32 {E[2*q:2*q+2]}, {X[2*q:2*q+2]}, {sNL} op_sel_hi:[1,0]')
        for q in Q: a(f'v_exp_f32 {E[2*q]}, {E[2*q]}\nv_exp_f32 {E[2*q+1]}, {E[2*q+1]}')
        for q in Q: a(f'v_lshlrev_b32 {S_[2*q]}, 16, {sv[q]}\nv_and_b32 {S_[2*q+1]}, 0xffff0000, {sv[q]}')
        for q in Q: a(f'v_pk_add_f32 {E[2*q:2*q+2]}, {E[2*q:2*q+2]}, 1.0 op_sel_hi:[1,0]')
        for q in Q: a(f'v_rcp_f32 {E[2*q]}, {E[2*q]}\nv_rcp_f32 {E[2*q+1]}, {E[2*q+1]}')
        for q in Q: a(f'v_pk_mul_f32 {X[2*q:2*q+2]}, {X[2*q:2*q+2]}, {S_[2*q:2*q+2]}')
        for q in Q: a(f'v_pk_fma_f32 {X[2*q:2*q+2]}, {X[2*q:2*q+2]}, {E[2*q:2*q+2]}, {U_[2*q:2*q+2]}')
        for q in Q: a(f'v_cvt_pk_bf16_f32 {sv[q]}, {X[2*q]}, {X[2*q+1]}')
        a(f'v_permlane32_swap_b32 {sv[4*hf]}, {sv[4*hf+2]}\nv_permlane32_swap_b32 {sv[4*hf+1]}, {sv[4*hf+3]}')
        a(f'buffer_store_dwordx4 {sv[4*hf:4*hf+4]}, {vO}, {k.sOut}, 0 offen offset:{32*hf}')
```

```python
from gen import *
from asmlib import R, TRANS
from collections import deque

def AG(s, n): return R('a', s, n)
def L(txt): return [l.strip() for l in txt.strip().split('\n') if l.strip()]
def cost(x):
    if isinstance(x, tuple): return x[1]
    if '\n' in x: return sum(cost(y) for y in x.split('\n'))
    if x.startswith(TRANS): return 8
    if x.startswith(('buffer_', 'global_')): return 8
    return 4
def put(a, x):
    if isinstance(x, tuple): return x[0]()
    return a(x)
def glue(items):
    out = []; pend = None
    for x in items:
        if pend is not None: x = pend + '\n' + x; pend = None
        if isinstance(x, str) and x.split('\n')[-1].startswith('s_cmp'): pend = x
        else: out.append(x)
    assert pend is None
    return out
def weave(a, main, side, every, start=0):
    side = deque(side); main = glue(main)
    for n, x in enumerate(main):
        put(a, x)
        if side and n >= start and (n - start) % every == every - 1: put(a, side.popleft())
    while side: put(a, side.popleft())
class Fill:
    def __init__(self, a): self.a, self.q, self.carry = a, deque(), 0
    def add(self, items): self.q.extend(glue(items))
    def gap(self, budget):
        self.carry = min(self.carry + budget, budget + 4)
        while self.q and self.carry >= cost(self.q[0]):
            x = self.q.popleft(); self.carry -= cost(x); put(self.a, x)
    def flush(self):
        while self.q: put(self.a, self.q.popleft())

class Stream:
    def __init__(self, k, srd, voff, npair, depth, rowbytes, areg):
        self.k, self.srd, self.voff, self.n, self.depth, self.rb, self.areg = k, srd, voff, npair, depth, rowbytes, areg
        self.sM = k.s.alloc('stM'); self.sO = k.s.alloc('stO'); self.vA = k.v.alloc('stA', 2); self.sB = k.s.alloc('stB'); self.sE = k.s.alloc('stE')
        self.ftok = {}; self.ctok = {}; self.nf = 0; self.nc = 0
        self.slot = lambda q: (self.sM, self.vA, (q % depth) * 4096)
        self.reuse = lambda q: q - depth
    def fill_items(self):
        a = self.k.a; q = self.nf
        assert q < self.n
        self.nf += 1
        sM, _, o = self.slot(q)
        def head():
            r = self.reuse(q)
            if r >= 0: a.wait_lg(self.ctok[r])
            a(f's_add_u32 m0, {sM}, {o}')
            if q: a(f's_add_u32 {self.sO}, {self.sO}, {32 * self.rb}\ns_cmp_eq_u32 {self.sO}, {self.sE}\ns_cselect_b32 {self.sO}, {self.sB}, {self.sO}')
        def dma(e):
            def f():
                if 's' in os.environ.get('XC', '') and self.n == 16 and q >= 4: self.ftok[q] = -1; return
                self.ftok[q] = a(f'buffer_load_dwordx4 {self.voff[e]}, {self.srd}, {self.sO} offen offset:{1024*e} lds')
            return (f, 8)
        return [(head, 16)] + [dma(e) for e in range(4)]
    def cons_items(self):
        a = self.k.a; q = self.nc
        assert q < self.nf
        self.nc += 1
        _, vA, o = self.slot(q)
        out = []
        for st in range(2):
            for ph in range(2):
                d = self.areg(2 * q + st, ph)
                for io in range(2):
                    def f(d=d, ph=ph, io=io, st=st):
                        if (st, ph, io) == (0, 0, 0): a.wait_vm(self.ftok[q])
                        self.ctok[q] = a(f'ds_read_b64_tr_b16 {d[2*io:2*io+2]}, {vA[ph]} offset:{o + 2048*st + 1024*io}')
                    out.append((f, 4))
        return out
    def init(self, rot):
        return f's_add_u32 {self.sE}, {self.sB}, {32 * self.rb * self.n}\ns_mul_i32 {self.sO}, {rot}, {32 * self.rb}\ns_add_u32 {self.sO}, {self.sO}, {self.sB}'
    def free(self): self.k.s.release(self.sM, self.sO, self.sB, self.sE); self.k.v.release(self.vA)

def cs3_items(k, upto):
    out = []
    while k.ncs3 < upto:
        q = k.ncs3; k.ncs3 += 1
        for ph in range(2):
            d = k.cs3a[4 * ph:4 * ph + 4]
            out.append(f'v_mfma_f32_16x16x32_bf16 {d}, {AG(128 * ph + 4 * q, 4)}, {k.B16}, {d if q else 0}')
    return out

def w_dma_items(k, srd, toks, rot=None):
    a = k.a; out = []
    for c in range(4):
        if rot is None: out.append((lambda c=c: a(f's_add_u32 m0, {k.sW12}, {L_W + c*16384}\ns_add_u32 {k.sT[5]}, {k.sWoff}, {c*131072}'), 8))
        else: out.append((lambda c=c: a(f's_add_u32 m0, {k.sW12}, {L_W + c*16384}\ns_add_u32 {k.sT[5]}, {rot}, {c*131072}\ns_and_b32 {k.sT[5]}, {k.sT[5]}, 0x7ffff'), 12))
        for e in range(4):
            def f(c=c, e=e): toks[c] = a(f'buffer_load_dwordx4 {k.vWd[e]}, {srd}, {k.sT[5]} offen offset:{1024*e} lds')
            out.append((f, 8))
    return out
```

```python
import sys, struct
sys.path.insert(0, 'gen')
from asmlib import Asm, Regs, R

def fb(x): return '0x%08x' % struct.unpack('<I', struct.pack('<f', x))[0]

NAME = 'recurrent_scan__ssm_conv_s4d__mixer_s_mlp__prompt'
WS_H, WS_X1, WS_H3 = 0, 2 << 20, 4 << 20
WS_XT, WS_ST, WS_STAT, WS_FLAG, WS_TS = 12 << 20, 15 << 20, 18 << 20, 19 << 20, (19 << 20) + 65536
WS_SIZE = 20 << 20
XTS = 4224
XTT = 8448
F1R, F2, F3, F1C, FC = 0, 4096, 8192, 12288, 16384
UKC = 16896
L_W = 69632
L_XS = 135168; XSW = 2544
L_STATP = 145344
L_SP = 147456
L_CP = 69632; CS = 4160
L_STG = 102912
L_UC = 152064; UCS = 5088; UCP = 992
L_KT = 152064 + 16; KTS = 3088
L_CSX = 67584
KG_CH = 27648; KG_R = 512; KG_E = 22; KA = 200
L_SU = 135680
L_ST2 = 69632
L_W4 = 77824
OOB = 0x80000000
import os
FINE = os.environ.get('FINE')
FAST = os.environ.get('FAST')
ROT = int(os.environ.get('ROT', 0))
TSOP = 's_memtime' if os.environ.get('TSCLK') else 's_memrealtime'

class K:
    def __init__(self, stop=99, ts=False):
        self.a = Asm(); self.v = Regs('v', 256, 1); self.s = Regs('s', 100, 3)
        self.v.top = {'vts','lane','par','vWd','vW3','vnonce','flagoff','GA','vTrP','B16','h','tt','acc','U8','vCW','vCR','l16','vP8','vP32','cs3a','stA','t','CS3','D','junk','vT','cA','cB','cS','polld','vB4a','vB4','vSD','vO','vSR','vRW','vRR'} | set(os.environ.get('TOPX','').split(','))
        self.stop = stop; self.ts = ts; self.nts = 0; self.stubs = []

    def T(self):
        if not self.ts: return
        if self.nts: self.a(f'v_writelane_b32 {self.vTS}, {self.tsr[0]}, {self.nts - 1}')
        self.nts += 1
        self.a(f'{TSOP} {self.tsr}')

    def srd(self, name, ptr, nbytes):
        r = self.s.alloc(name, 4)
        self.a(f's_mov_b32 {r[0]}, {ptr[0]}\ns_mov_b32 {r[1]}, {ptr[1]}\ns_mov_b32 {r[2]}, {hex(nbytes)}\ns_mov_b32 {r[3]}, 0x20000')
        return r

    def sconst(self, name, val):
        r = self.s.alloc(name); self.a(f's_mov_b32 {r}, {val}'); return r

    def st(self, *txts):
        a = self.a
        if not FAST:
            for x in txts: r = a(x + ' sc1')
            return r
        for x in txts: a.e(x, only_wait=True)
        sl = a.label_name('SLOW'); bk = a.label_name('BACK')
        a(f's_cmp_lg_u32 {self.sSlow}, 0')
        a.raw(f's_cbranch_scc1 {sl}')
        for x in txts: r = a(x)
        a.label(bk)
        self.stubs += [sl + ':'] + [x + ' sc1' for x in txts] + [f's_branch {bk}']
        return r

    def flag_store(self, soff, row=False):
        x = f'buffer_store_dwordx2 {self.vNonce}, {self.vFlagOff}, {self.sWS}, {soff} offen'
        if row and not os.environ.get('FLAGSC1'): self.st(x)
        else: self.a(x + ' sc1')

    def poll_issue(self, voff, soff, nm='polld'):
        a = self.a
        d = self.v.alloc(nm, 2)
        a(f'buffer_load_dwordx2 {d}, {voff}, {self.sWS}, {soff} offen sc1')
        return (d, voff, soff)

    def poll_check(self, p):
        a = self.a; d, voff, soff = p
        ok = a.label_name('PK'); lp = a.label_name('PL')
        a(f'v_cmp_ne_u64 vcc, {self.sNonce}, {d}')
        a.raw('s_nop 4')
        a.raw(f's_cbranch_vccz {ok}')
        a(f's_mov_b32 {self.sT[0]}, 0')
        a.label(lp)
        a.raw(f'buffer_load_dwordx2 {d}, {voff}, {self.sWS}, {soff} offen sc1')
        a.raw(f's_add_u32 {self.sT[0]}, {self.sT[0]}, 1')
        a.raw('s_waitcnt vmcnt(0)')
        a.raw(f'v_cmp_ne_u64 vcc, {self.sNonce}, {d}')
        a.raw(f's_cmp_gt_u32 {self.sT[0]}, 0x40000')
        a.raw(f's_cbranch_scc1 {ok}')
        a.raw('s_nop 2')
        a.raw(f's_cbranch_vccnz {lp}')
        a.label(ok)
        self.v.release(d)

    def gelu_ops(self, acc, cs, negm, c0r, c1r3, ir, out, tmp):
        def sel(x): return x[0], x[1]
        ops = []
        for g in range(2):
            P = range(4 * g, 4 * g + 4)
            t = lambda p: acc[2 * p:2 * p + 2]
            w = lambda p: tmp[2 * (p & 3):2 * (p & 3) + 2]
            for p in P:
                r, h = negm
                ops.append(f'v_pk_fma_f32 {t(p)}, {cs[2*p:2*p+2]}, {r}, {t(p)} op_sel:[0,{h},0] op_sel_hi:[1,{h},1]')
            for p in P: ops.append(f'v_pk_mul_f32 {w(p)}, {t(p)}, {t(p)}')
            for p in P:
                (r1, h1), (r0, h0) = c1r3, c0r
                ops.append(f'v_pk_fma_f32 {w(p)}, {w(p)}, {r1}, {r0} op_sel:[0,{h1},{h0}] op_sel_hi:[1,{h1},{h0}]')
            for p in P: ops.append(f'v_pk_mul_f32 {w(p)}, {w(p)}, {t(p)}')
            for p in P:
                ops.append(f'v_exp_f32 {w(p)[0]}, {w(p)[0]}'); ops.append(f'v_exp_f32 {w(p)[1]}, {w(p)[1]}')
            for p in P:
                r, h = ir
                ops.append(f'v_pk_fma_f32 {w(p)}, {w(p)}, {r}, {r} op_sel:[0,{h},{h}] op_sel_hi:[1,{h},{h}]')
            for p in P:
                ops.append(f'v_rcp_f32 {w(p)[0]}, {w(p)[0]}'); ops.append(f'v_rcp_f32 {w(p)[1]}, {w(p)[1]}')
            for p in P: ops.append(f'v_pk_mul_f32 {w(p)}, {w(p)}, {t(p)}')
            for p in P: ops.append(f'v_cvt_pk_bf16_f32 {out[p]}, {w(p)[0]}, {w(p)[1]}')
        return ops

    def cmul(self, d, x, y, t):
        self.a(f'v_pk_mul_f32 {t}, {x}, {y} op_sel:[0,0] op_sel_hi:[0,1]')
        self.a(f'v_pk_fma_f32 {d}, {x}, {y}, {t} op_sel:[1,1,0] op_sel_hi:[1,0,1] neg_lo:[1,0,0]')

    def finish(self):
        a = self.a
        if self.ts:
            self.T()
            a.wait_all()
            self.T()
            o = self.v.alloc('tso')
            a(f's_lshl_b32 {self.sT[0]}, s2, 10\ns_lshl_b32 {self.sT[1]}, {self.sW}, 8\ns_add_u32 {self.sT[0]}, {self.sT[0]}, {self.sT[1]}\ns_add_u32 {self.sT[0]}, {self.sT[0]}, {WS_TS}')
            a(f'v_and_b32 {o}, 63, v0\nv_lshlrev_b32 {o}, 2, {o}')
            a(f'buffer_store_dword {self.vTS}, {o}, {self.sWS}, {self.sT[0]} offen')
        a.wait_all()
        a.label('END')
        a.raw('s_endpgm')
        for x in self.stubs: a.raw(x)

    def build(self):
        import phases
        steps = phases.STEPS
        for n, f in enumerate(steps):
            if n > self.stop: break
            self.a.comment(f'---- {f.__name__} ----')
            f(self)
        self.finish()
        hdr = open(f'cdna_kernels/{NAME}.s.ref').read()
        top = hdr[:hdr.index('; @launch')]
        return top + f'''; @launch grid=(256,1,1) block=(256,1,1) lds=163840
.amdgcn_target "amdgcn-amd-amdhsa--gfx950"
.text
.globl {NAME}_kernel
.p2align 8
.type {NAME}_kernel,@function
{NAME}_kernel:
{self.a.text()}
.section .rodata,"a"
.p2align 6
.amdhsa_kernel {NAME}_kernel
  .amdhsa_next_free_vgpr 512
  .amdhsa_next_free_sgpr 102
  .amdhsa_accum_offset 256
  .amdhsa_group_segment_fixed_size 0
  .amdhsa_kernarg_size 120
  .amdhsa_user_sgpr_count 2
  .amdhsa_user_sgpr_kernarg_segment_ptr 1
  .amdhsa_system_sgpr_workgroup_id_x 1
.end_amdhsa_kernel
'''

if __name__ == '__main__':
    import argparse
    ap = argparse.ArgumentParser()
    ap.add_argument('--stop', type=int, default=99); ap.add_argument('--ts', action='store_true'); ap.add_argument('-o', default=f'cdna_kernels/{NAME}.s')
    g = ap.parse_args()
    k = K(g.stop, g.ts)
    open(g.o, 'w').write(k.build())
    print('vgpr hi', k.v.hi, 'sgpr hi', k.s.hi, 'instrs', len(k.a.ins))
```

```python
from util import *
def prologue(k):
    a, v, s = k.a, k.v, k.s
    a.label('KSTART')
    a('s_cmp_ge_u32 s2, 0x100')
    a.raw('s_cbranch_scc1 END')
    ka = s.alloc('ka', 16); kb = s.alloc('kb', 8); kc = s.alloc('kc', 4); kd = s.alloc('kd', 2)
    k.kc = kc
    a(f's_load_dwordx16 {ka}, s[0:1], 0\ns_load_dwordx8 {kb}, s[0:1], 64\ns_load_dwordx4 {kc}, s[0:1], 96\ns_load_dwordx2 {kd}, s[0:1], 112')
    if k.ts:
        k.tsr = s.alloc('ts', 2); k.vTS = v.alloc('vts'); k.T()
    k.sT = sT = s.alloc('sT', 6, 2)
    k.sI = sI = s.alloc('i'); k.sJ = sJ = s.alloc('j'); k.sW = sW = s.alloc('w'); k.sA = sA = s.alloc('a'); k.sB = sB = s.alloc('b')
    k.sY = sY = s.alloc('y')
    k.vL = vL = v.alloc('lane'); k.junk = junk = v.alloc('junk')
    t = v.alloc('pt', 8)
    a(f'''v_lshrrev_b32 {t[0]}, 6, v0
          v_and_b32 {vL}, 63, v0
          s_lshr_b32 {sY}, s2, 3
          v_readfirstlane_b32 {sW}, {t[0]}
          s_getpc_b64 {sT[2:4]}''')
    a.label('PCREF')
    a(f'''s_lshl_b32 {sT[0]}, {sY}, 3
          s_lshl_b32 {sT[1]}, {sW}, 1
          s_add_u32 {sT[0]}, {sT[0]}, {sT[1]}
          v_add_u32 {t[1]}, {sT[0]}, {vL}
          v_lshlrev_b32 {t[1]}, 7, {t[1]}
          v_min_u32 {t[1]}, END-PCREF, {t[1]}
          s_mov_b64 exec, 3''')
    a.touch(f'global_load_dword {junk}, {t[1]}, {sT[2:4]}')
    a(f'''s_mov_b64 exec, -1
          s_and_b32 {sT[0]}, s2, 7
          s_lshr_b32 {sT[1]}, s2, 6
          s_lshl_b32 {sT[4]}, {sT[0]}, 2
          s_add_u32 {sI}, {sT[4]}, {sT[1]}
          s_and_b32 {sJ}, {sY}, 7
          s_and_b32 {sA}, {sW}, 1
          s_lshr_b32 {sB}, {sW}, 1''')
    k.sRg = sRg = s.alloc('rg'); k.sRu = sRu = s.alloc('ru'); k.sNeg = sNeg = s.alloc('neg'); k.sMag = sMag = s.alloc('mag')
    sR0 = s.alloc('r0'); k.sD = sD = s.alloc('d')
    vTW = v.alloc('vTW'); vTU = v.alloc('vTU')
    a(f'''s_bfe_u32 {sNeg}, {sJ}, 0x10001
          s_lshr_b32 {sMag}, {sJ}, 2
          s_add_u32 {sMag}, {sMag}, 1
          s_sub_u32 {sT[1]}, 2, {sMag}
          s_cmp_eq_u32 {sNeg}, 1
          s_cselect_b32 {sRg}, {sMag}, {sT[1]}
          s_cselect_b32 {sRu}, 0, 2
          s_lshl_b32 {sR0}, {sI}, 6
          s_sub_u32 {sR0}, {sR0}, {sRu}
          s_lshl_b32 {sT[1]}, {sY}, 2
          s_add_u32 {sT[1]}, {sT[1]}, {sW}
          s_lshl_b32 {sT[4]}, {sT[1]}, 12
          v_lshl_add_u32 {vTW}, {vL}, 7, {sT[4]}
          s_lshl_b32 {sT[0]}, {sT[0]}, 18
          s_lshl_b32 {sT[1]}, {sT[1]}, 11
          s_add_u32 {sT[0]}, {sT[0]}, {sT[1]}
          v_lshl_add_u32 {vTU}, {vL}, 7, {sT[0]}
          s_lshl_b32 {sD}, {sJ}, 6
          s_lshl_b32 {sT[0]}, {sI}, 1
          s_add_u32 {sD}, {sD}, {sT[0]}
          s_add_u32 {sD}, {sD}, {sB}
          s_lshl_b32 {sT[0]}, {sD}, 8
          s_lshl_b32 {sT[1]}, {sA}, 7
          s_add_u32 {sT[0]}, {sT[0]}, {sT[1]}
          s_lshl_b32 {sT[1]}, {sD}, 1
          v_lshl_add_u32 {t[6]}, {vL}, 1, {sT[0]}
          v_mov_b32 {t[7]}, {sT[1]}''')
    vU = v.alloc('vU', 4); vUX = v.alloc('vUX')
    a(f'''v_lshrrev_b32 {t[0]}, 4, {vL}
          v_and_b32 {t[1]}, 15, {vL}
          v_xor_b32 {t[1]}, {t[1]}, {t[0]}
          v_lshlrev_b32 {t[1]}, 4, {t[1]}
          s_lshl_b32 {sT[0]}, {sW}, 4
          s_add_u32 {sT[0]}, {sT[0]}, {sR0}
          v_add_u32 {t[2]}, {sT[0]}, {t[0]}
          v_lshlrev_b32 {t[2]}, 10, {t[2]}
          v_add_u32 {vU[0]}, {t[2]}, {t[1]}''')
    for e in range(1, 4):
        a(f'v_xor_b32 {t[3]}, {64*e}, {t[1]}\nv_add_u32 {t[3]}, {3072*e}, {t[3]}\nv_add_u32 {vU[e]}, {t[2]}, {t[3]}')
    a(f'''s_add_u32 {sT[0]}, {sR0}, 64
          v_add_u32 {t[2]}, {sT[0]}, {t[0]}
          v_lshlrev_b32 {t[2]}, 10, {t[2]}
          s_lshl_b32 {sT[0]}, {sW}, 8
          v_add3_u32 {vUX}, {t[2]}, {t[1]}, {sT[0]}
          v_mov_b32 {t[5]}, {hex(OOB)}
          s_mul_i32 {sT[0]}, {sW}, {UKC}
          s_add_u32 m0, {sT[0]}, 16384''')
    k.sW12 = sW12 = s.alloc('w12')
    a(f's_lshl_b32 {sW12}, {sW}, 12')
    if FINE: k.T()
    k.vPar = par = v.alloc('par', 8, 2)
    for q in range(4): a(f'global_load_ushort {par[q]}, {t[6]}, {ka[2+2*q:4+2*q]}')
    a(f'global_load_ushort {par[4]}, {t[7]}, {ka[10:12]}\nglobal_load_ushort {par[5]}, {t[7]}, {ka[12:14]}')
    a(f'v_xor_b32 {t[6]}, 0x80, {t[6]}')
    a(f'global_load_ushort {par[6]}, {t[6]}, {ka[6:8]}\nglobal_load_ushort {par[7]}, {t[6]}, {ka[8:10]}')
    k.sU = k.srd('sU', ka[0:2], 2048 * 1024)
    k.sW1 = k.srd('sW1', kb[0:2], 512 * 1024)
    a('s_mov_b32 exec_lo, 0xffff\ns_mov_b32 exec_hi, 0')
    a.touch(f'buffer_load_dword {junk}, {vTU}, {k.sU}, 0 offen')
    a('s_mov_b32 exec_lo, -1')
    a.touch(f'buffer_load_dword {junk}, {vTW}, {k.sW1}, 0 offen')
    a(f'buffer_load_dwordx4 {vUX}, {k.sU}, 0 offen lds')
    a('s_mov_b32 exec_hi, -1')
    def udma(kc_):
        a(f's_add_u32 m0, {sW12}, {kc_*(UKC-256)}')
        for e in range(4): k.utok = a(f'buffer_load_dwordx4 {vU[e]}, {k.sU}, 0 offen offset:{1024*e+256*kc_} lds')
    udma(0)
    udma(1)
    s.release(ka)
    k.T()
    k.sW2 = k.srd('sW2', kb[2:4], 512 * 1024)
    k.sW3 = k.srd('sW3', kb[4:6], 512 * 3584)
    k.sW4 = k.srd('sW4', kb[6:8], 1792 * 1024)
    k.sOut = k.srd('sOut', kc[0:2], 2048 * 1024)
    k.sWS = k.srd('sWS', kd, WS_SIZE)
    s.release(kb, kd, sR0)
    k.sNonce = s.alloc('nonce', 2); k.vNonce = v.alloc('vnonce', 2); k.vFlagOff = v.alloc('flagoff')
    skip = a.label_name('NN')
    a(f'''v_cmp_eq_u32 vcc, 0, v0
          v_mov_b32 {t[0]}, 0
          s_or_b32 {sT[0]}, s2, {sW}
          v_cndmask_b32 {k.vFlagOff}, {t[5]}, {t[0]}, vcc
          s_cmp_lg_u32 {sT[0]}, 0''')
    a.raw(f's_cbranch_scc1 {skip}')
    for x in L(f'''s_memrealtime {k.sNonce}
          s_waitcnt lgkmcnt(0)
          s_or_b32 {k.sNonce[0]}, {k.sNonce[0]}, 1
          v_mov_b32 {k.vNonce[0]}, {k.sNonce[0]}
          v_mov_b32 {k.vNonce[1]}, {k.sNonce[1]}
          s_mov_b64 exec, 1
          global_store_dwordx2 {t[0]}, {k.vNonce}, {kc[2:4]} sc1
          s_mov_b64 exec, -1'''): a.raw(x)
    a.label(skip)
    k.vWd = vWd = v.alloc('vWd', 4); k.vW3 = vW3 = v.alloc('vW3', 4); k.sWoff = sWoff = s.alloc('woff')
    a(f'''v_lshrrev_b32 {t[3]}, 3, {vL}
          v_and_b32 {t[4]}, 7, {vL}
          v_bfe_u32 {t[2]}, {vL}, 4, 1
          v_lshlrev_b32 {t[2]}, 2, {t[2]}
          v_xor_b32 {t[4]}, {t[4]}, {t[2]}
          v_lshlrev_b32 {t[4]}, 4, {t[4]}
          v_lshl_add_u32 {vWd[0]}, {t[3]}, 10, {t[4]}
          v_mul_u32_u24 {t[3]}, 3584, {t[3]}
          v_add_u32 {vW3[0]}, {t[3]}, {t[4]}
          s_cmp_eq_u32 {sW}, 3
          s_cselect_b32 {sT[2]}, 64, 128
          v_cmp_le_u32 vcc, {sT[2]}, {t[4]}
          s_lshl_b32 {sWoff}, {sW}, 15
          s_lshl_b32 {sT[0]}, {sJ}, 7
          s_add_u32 {sWoff}, {sWoff}, {sT[0]}
          v_cndmask_b32 {vW3[0]}, {vW3[0]}, {t[5]}, vcc''')
    for e in range(1, 4): a(f'v_add_u32 {vWd[e]}, {7168*e}, {vWd[0]}\nv_add_u32 {vW3[e]}, {(8*3584-1024)*e}, {vW3[0]}')
    k.vT = vT = v.alloc('vT', 3, 1)
    a(f'''s_lshl_b32 {sT[0]}, {sY}, 2
          s_add_u32 {sT[0]}, {sT[0]}, {sW}
          s_lshl_b32 {sT[0]}, {sT[0]}, 15
          s_and_b32 {sT[1]}, s2, 7
          s_lshl_b32 {sT[1]}, {sT[1]}, 7
          s_add_u32 {sT[0]}, {sT[0]}, {sT[1]}
          v_lshl_add_u32 {vT[0]}, {vL}, 10, {sT[0]}
          v_cmp_lt_u32 vcc, 31, {vL}
          v_cndmask_b32 {vT[0]}, {vT[0]}, {t[5]}, vcc
          v_subrev_u32 {vT[1]}, {4096*128}, {vT[0]}
          v_subrev_u32 {vT[2]}, {18432*128}, {vT[0]}''')
    k.vB = vB = v.alloc('vB', 8); k.vAe = vAe = v.alloc('vAe'); k.vAo = vAo = v.alloc('vAo')
    k.vTr = vTr = v.alloc('vTrP'); k.B16 = B16 = v.alloc('B16', 4); k.vH = vH = v.alloc('h'); k.vTt = vTt = v.alloc('tt')
    k.vSW = vSW = v.alloc('vSW'); k.vSG = vSG = v.alloc('vSG'); k.vSU = vSU = v.alloc('vSU'); k.vUo = vUo = v.alloc('vUo', 4)
    a(f'''v_and_b32 {vTt}, 31, {vL}
          v_lshrrev_b32 {vH}, 5, {vL}
          s_lshl_b32 {sT[0]}, {sB}, 5
          s_add_u32 {sT[1]}, {sT[0]}, {sRg}
          v_add_u32 {t[0]}, {sT[1]}, {vTt}
          v_and_b32 {t[1]}, 15, {t[0]}
          v_xor_b32 {t[1]}, {t[1]}, {vH}
          s_lshl_b32 {sT[2]}, {sA}, 1
          v_xor_b32 {t[1]}, {sT[2]}, {t[1]}
          v_lshlrev_b32 {t[1]}, 4, {t[1]}
          v_lshl_add_u32 {vB[0]}, {t[0]}, 8, {t[1]}''')
    for q in range(1, 8): a(f'v_xor_b32 {vB[q]}, {32*q}, {vB[0]}')
    a(f'''v_lshlrev_b32 {vSG}, 5, {t[0]}
          v_add_u32 {vSG}, {L_STATP}, {vSG}
          v_add_u32 {t[2]}, {sT[2]}, {vH}
          v_lshl_add_u32 {vSW}, {t[2]}, 3, {vSG}
          s_add_u32 {sT[1]}, {sT[0]}, {sRu}
          v_add_u32 {t[0]}, {sT[1]}, {vTt}
          v_lshlrev_b32 {vSU}, 5, {t[0]}
          v_add_u32 {vSU}, {L_STATP}, {vSU}
          s_and_b32 {sT[1]}, {sJ}, 1
          s_lshl_b32 {sT[1]}, {sT[1]}, 3
          s_lshl_b32 {sT[3]}, {sA}, 2
          s_add_u32 {sT[1]}, {sT[1]}, {sT[3]}
          v_and_b32 {t[1]}, 15, {t[0]}
          v_xor_b32 {t[1]}, {sT[1]}, {t[1]}
          v_lshlrev_b32 {t[1]}, 4, {t[1]}
          v_lshl_add_u32 {t[1]}, {t[0]}, 8, {t[1]}
          v_lshl_add_u32 {t[1]}, {vH}, 3, {t[1]}
          s_lshr_b32 {sT[1]}, {sJ}, 1
          s_mul_i32 {sT[1]}, {sT[1]}, {UKC}
          v_add_u32 {vUo[0]}, {sT[1]}, {t[1]}
          v_xor_b32 {vUo[1]}, 16, {vUo[0]}
          v_xor_b32 {vUo[2]}, 32, {vUo[0]}
          v_xor_b32 {vUo[3]}, 48, {vUo[0]}''')
    k.vXW = vXW = v.alloc('vXW'); k.vXR = vXR = v.alloc('vXR'); k.vXT = vXT = v.alloc('vXT')
    a(f'''v_bfe_u32 {t[0]}, {vL}, 2, 2
          v_and_b32 {t[1]}, 3, {vL}
          v_bfe_u32 {t[2]}, {vL}, 4, 1
          v_lshlrev_b32 {t[1]}, 3, {t[1]}
          v_lshl_add_u32 {t[1]}, {t[2]}, 5, {t[1]}
          s_mul_i32 {sT[0]}, {sW}, {XSW}
          s_add_u32 {sT[0]}, {sT[0]}, {L_XS}
          v_lshl_add_u32 {t[3]}, {vH}, 3, {t[0]}
          v_mul_u32_u24 {t[3]}, 72, {t[3]}
          v_add3_u32 {vXR}, {t[3]}, {t[1]}, {sT[0]}
          v_mul_u32_u24 {t[3]}, 72, {vTt}
          v_lshl_add_u32 {t[3]}, {vH}, 3, {t[3]}
          v_add_u32 {vXW}, {sT[0]}, {t[3]}
          v_mul_u32_u24 {t[3]}, 80, {vTt}
          v_lshl_add_u32 {t[3]}, {vH}, 4, {t[3]}
          v_add_u32 {vXT}, {sT[0]}, {t[3]}
          v_lshrrev_b32 {t[2]}, 1, {t[0]}
          v_lshl_add_u32 {t[1]}, {t[2]}, 6, {t[1]}
          v_lshl_add_u32 {t[1]}, {t[0]}, 7, {t[1]}
          v_lshl_add_u32 {vTr}, {vH}, 9, {t[1]}
          v_lshl_add_u32 {t[1]}, {vH}, 10, {t[1]}
          s_lshl_b32 {sT[1]}, {sA}, 6
          v_xor_b32 {t[1]}, {sT[1]}, {t[1]}
          s_lshl_b32 {sT[1]}, {sA}, 11
          s_add_u32 {sT[3]}, {sT[1]}, {L_W}
          s_sub_u32 {sT[1]}, {L_W}, {sT[1]}
          v_add_u32 {vAe}, {sT[3]}, {t[1]}
          v_add_u32 {vAo}, {sT[1]}, {t[1]}
          v_lshrrev_b32 {t[0]}, 3, {vL}
          v_lshrrev_b32 {t[1]}, 4, {vL}
          v_xor_b32 {t[0]}, {t[0]}, {t[1]}
          v_and_b32 {t[0]}, 1, {t[0]}
          v_cmp_eq_u32 vcc, 0, {t[0]}
          v_mov_b32 {t[2]}, 0x3f803f80''')
    for q in range(4): a(f'v_cndmask_b32 {B16[q]}, 0, {t[2]}, vcc')
    k.vXE = vXE = v.alloc('vXE', 2); k.vCW = vCW = v.alloc('vCW'); k.vCR = vCR = v.alloc('vCR'); k.vL16 = vL16 = v.alloc('l16')
    k.sXM = sXM = s.alloc('xm', 2); k.sHo = sHo = s.alloc('ho'); k.sXo = sXo = s.alloc('xo'); k.sFr = sFr = s.alloc('fr'); k.sFc = sFc = s.alloc('fc')
    a(f'''s_cmp_eq_u32 {sNeg}, 1
          s_cselect_b32 {sT[0]}, 0, 64
          s_cselect_b32 {sXM[0]}, 15, 31
          s_lshl_b32 {sXM[0]}, 1, {sXM[0]}
          s_cmp_eq_u32 {sMag}, 1
          s_cselect_b32 {sXM[0]}, {sXM[0]}, 0x80008000
          s_mov_b32 {sXM[1]}, 0
          v_and_b32 {t[0]}, 1, {t[1]}
          v_add_u32 {t[0]}, {sT[0]}, {t[0]}
          v_and_b32 {t[2]}, 15, {vL}
          v_lshlrev_b32 {t[2]}, 4, {t[2]}
          v_lshl_add_u32 {t[2]}, {t[0]}, 8, {t[2]}
          s_mul_i32 {sT[1]}, {sW}, {UKC}
          v_add_u32 {vXE[0]}, {sT[1]}, {t[2]}
          s_lshl_b32 {sT[1]}, {sW}, 3
          s_add_u32 {sT[1]}, {sT[1]}, {L_STATP}
          v_lshl_add_u32 {vXE[1]}, {t[0]}, 5, {sT[1]}
          v_bfe_u32 {t[0]}, {vL}, 3, 1
          v_lshlrev_b32 {t[2]}, 4, {t[1]}
          v_lshl_add_u32 {t[0]}, {t[0]}, 6, {t[2]}
          s_lshl_b32 {sT[0]}, {sW}, 8
          s_add_u32 {sT[0]}, {sT[0]}, {L_CSX}
          v_add_u32 {vCW}, {sT[0]}, {t[0]}
          v_lshl_add_u32 {vCR}, {vH}, 4, {sT[0]}
          v_lshlrev_b32 {vL16}, 4, {vL}
          s_lshl_b32 {sHo}, {sI}, 16
          s_lshl_b32 {sT[0]}, {sB}, 15
          s_add_u32 {sHo}, {sHo}, {sT[0]}
          s_lshl_b32 {sT[0]}, {sJ}, 12
          s_add_u32 {sHo}, {sHo}, {sT[0]}
          s_lshl_b32 {sT[0]}, {sA}, 11
          s_add_u32 {sHo}, {sHo}, {sT[0]}
          s_lshl_b32 {sXo}, {sJ}, 5
          s_add_u32 {sXo}, {sXo}, {sI}
          s_mul_i32 {sXo}, {sXo}, {XTT}
          s_lshl_b32 {sT[1]}, {sW}, 11
          s_add_u32 {sXo}, {sXo}, {sT[1]}
          s_add_u32 {sXo}, {sXo}, {WS_XT}
          s_lshl_b32 {sFr}, {sI}, 10
          s_add_u32 {sFr}, {sFr}, {WS_FL}
          s_lshl_b32 {sFc}, {sJ}, 12
          s_add_u32 {sFc}, {sFc}, {WS_FL + F1C}''')
    s.release(sRg, sRu, sNeg, sMag)
    k.sOnes = k.sconst('ones', '0x3f803f80'); k.sI512 = k.sconst('i512', fb(1.0 / 512)); k.sEps = k.sconst('eps', fb(1e-5))
    k.sC0 = k.sconst('c0', fb(-2.302208198)); k.sC1 = k.sconst('c1', fb(-0.1029432397)); k.sL2 = k.sconst('log2e', fb(1.4426950408889634))
    k.GA = GA = v.alloc('GA', 9, 1)
    sX = k.sconst('gx', hex((L_KT - 68096) & 0xffffffff))
    a(f'''v_lshlrev_b32 {t[0]}, 3, v0
          v_sub_u32 {t[0]}, 2047, {t[0]}
          v_cvt_f32_i32 {t[1]}, {t[0]}
          v_lshlrev_b32 {t[0]}, 2, {t[0]}
          v_add_u32 {t[0]}, {L_KT}, {t[0]}''')
    for q in range(0, 10, 2):
        a(f'v_add_f32 {t[2]}, {fb(-q)}, {t[1]}\nv_add_f32 {t[3]}, {fb(-q-1)}, {t[1]}')
        a(f'v_max_f32 {t[2]}, {fb(128.0)}, {t[2]}\nv_max_f32 {t[3]}, {fb(128.0)}, {t[3]}')
        a(f'v_cvt_pk_bf16_f32 {t[2]}, {t[2]}, {t[3]}')
        for z in range(2):
            if q + z > 8: continue
            a(f'v_mad_u32_u16 {t[4]}, {t[2]}, 4, {sX} op_sel:[{z},0,0,0]\nv_subrev_u32 {t[5]}, {4*(q+z)}, {t[0]}\nv_min_i32 {GA[q+z]}, {t[4]}, {t[5]}')
    s.release(sX)
    k.T()
    udma(2); udma(3)
    v.release(vU, vUX, vTU)
    k.wt = {}
    WD = w_dma_items(k, k.sW1, k.wt)
    sweep = [(lambda q=q: a.touch(f'buffer_load_dword {junk}, {vT[q]}, {(k.sW2, k.sW3, k.sW4)[q]}, 0 offen'), 8) for q in range(3)]
    kchains(k, t, WD + ([] if os.environ.get('NOSWEEP') else sweep))
    v.release(vT)
    if FAST:
        k.sSlow = s.alloc('slow'); k.vGw = v.alloc('vGw', 2)
        skip = a.label_name('NX')
        a(f'''s_getreg_b32 {k.sSlow}, hwreg(HW_REG_XCC_ID, 0, 3)
          s_lshl_b32 {sT[0]}, {sI}, 2
          s_or_b32 {k.sSlow}, {k.sSlow}, 8
          s_lshl_b32 {sT[1]}, {sJ}, 2
          v_mov_b32 {k.vGw[0]}, {sT[0]}
          s_lshl_b32 {sT[1]}, {k.sSlow}, {sT[1]}
          s_mul_i32 {k.sSlow}, {k.sSlow}, 0x11111111
          v_mov_b32 {t[0]}, {sT[1]}
          s_cmp_lg_u32 {sW}, 0''')
        a.raw(f's_cbranch_scc1 {skip}')
        for x in L(f'''s_mov_b64 exec, 1
          global_atomic_or {k.vGw[0]}, {t[0]}, {kc[2:4]} offset:128 sc1
          s_mov_b64 exec, -1'''): a.raw(x)
        a.label(skip)
    w3_setup(k)
    k.T()
    v.release(vTW, t)

def w3_setup(k):
    a, v, s = k.a, k.v, k.s
    sT, sW, sJ = k.sT, k.sW, k.sJ
    k.NP = NP = int(os.environ.get('NP', 0)); k.NE = NE = NP + int(os.environ.get('NE', 2))
    k.w3 = w3 = Stream(k, k.sW3, k.vW3, 16, 3, 3584, lambda q, ph: AG(128 * ph + 4 * q, 4))
    k.sRot = s.alloc('rot3'); k.sW2o = s.alloc('w2o')
    sSU = s.alloc('sSU'); vSU = v.alloc('stA', 2); k.w3x = (sSU, vSU)
    w3.slot = lambda q: (sSU, vSU, L_SP - L_SU) if q < NP else (sSU, vSU, 0) if q < NE or (q - NE) % 3 == 2 else (w3.sM, w3.vA, ((q - NE) % 3) * 4096)
    w3.reuse = lambda q: q - 1 if q < NE and q != NP else -1 if q < NE + 2 else (NE - 1 if NE > NP else -1) if q == NE + 2 else q - 3
    a(f'''s_lshl_b32 {sSU}, {sW}, 12
          s_add_u32 {sSU}, {sSU}, {L_SU}
          s_lshl_b32 {w3.sM}, {sW}, 13
          s_add_u32 {w3.sM}, {w3.sM}, {L_STG}
          s_mul_i32 {w3.sB}, {sJ}, 448
          s_lshl_b32 {sT[0]}, {sW}, 7
          s_add_u32 {w3.sB}, {w3.sB}, {sT[0]}
          s_lshl_b32 {sT[0]}, {k.sI}, 1
          s_add_u32 {sT[0]}, {sT[0]}, {sJ}
          s_lshl_b32 {sT[0]}, {sT[0]}, 1
          s_and_b32 {k.sRot}, {sT[0]}, {15 if ROT & 2 else 0}
          {w3.init(k.sRot)}
          s_lshl_b32 {sT[0]}, {sJ}, 16
          s_and_b32 {sT[0]}, {sT[0]}, {-1 if ROT & 1 else 0}
          s_add_u32 {k.sW2o}, {k.sWoff}, {sT[0]}
          v_add_u32 {w3.vA[0]}, {w3.sM}, {k.vTr}
          v_xor_b32 {w3.vA[1]}, 64, {w3.vA[0]}
          v_add_u32 {vSU[0]}, {sSU}, {k.vTr}
          v_xor_b32 {vSU[1]}, 64, {vSU[0]}''')

def kchains(k, t, side):
    a, v, s = k.a, k.v, k.s
    vL, sT, par = k.vL, k.sT, k.vPar
    z1 = v.alloc('z1', 2); z8 = v.alloc('z8', 2); z2 = v.alloc('z256', 2); z16 = v.alloc('z16', 2)
    g = v.alloc('g', 16); tm = v.alloc('tm', 6); e0 = v.alloc('e0', 2); e1 = v.alloc('e1', 2); pkr = v.alloc('pkr', 4, 1)
    k.sKinv = s.alloc('kinv')
    M = [f'v_lshlrev_b32 {par[q]}, 16, {par[q]}' for q in range(8)]
    M += L(f'''v_mul_f32 {t[0]}, {k.sL2}, {par[0]}
          v_mul_f32 {t[1]}, {k.sL2}, {par[4]}
          v_exp_f32 {t[0]}, {t[0]}
          v_exp_f32 {t[1]}, {t[1]}
          v_max3_f32 {t[3]}, |{par[2]}|, |{par[3]}|, |{par[6]}|
          v_cvt_pk_bf16_f32 {t[0]}, {t[0]}, {t[1]}
          v_max_f32 {t[3]}, |{par[7]}|, {t[3]}
          v_and_b32 {t[1]}, 0xffff0000, {t[0]}
          v_lshlrev_b32 {t[0]}, 16, {t[0]}
          v_mul_f32 {t[3]}, {t[3]}, {t[1]}
          v_mul_f32 {t[0]}, {t[0]}, {t[1]}
          v_mul_f32 {t[2]}, {par[1]}, {t[1]}
          v_max_f32_dpp {t[3]}, {t[3]}, {t[3]} row_shr:1 row_mask:0xf bank_mask:0xf
          v_mul_f32 {g[0]}, {par[2]}, {t[1]}
          v_mul_f32 {g[1]}, {par[3]}, {t[1]}
          v_max_f32_dpp {t[3]}, {t[3]}, {t[3]} row_shr:2 row_mask:0xf bank_mask:0xf
          v_mul_f32 {t[0]}, {fb(-1.4426950408889634)}, {t[0]}
          v_mul_f32 {t[2]}, 0.15915494, {t[2]}''')
    dpp = ['row_shr:4', 'row_shr:8', 'row_bcast:15', 'row_bcast:31']
    for z, p in ((z1, 1.0), (z8, 8.0), (z16, 16.0), (z2, 256.0)):
        sg = '-' if p in (8.0, 16.0) else ''
        M += L(f'''v_max_f32_dpp {t[3]}, {t[3]}, {t[3]} {dpp.pop(0)} row_mask:0xf bank_mask:0xf
              v_mul_f32 {t[4]}, {fb(p)}, {t[0]}
              v_mul_f32 {t[5]}, {fb(p)}, {t[2]}
              v_exp_f32 {t[4]}, {t[4]}
              v_fract_f32 {t[5]}, {t[5]}
              v_cos_f32 {z[0]}, {t[5]}
              v_sin_f32 {z[1]}, {t[5]}
              v_mul_f32 {z[0]}, {z[0]}, {t[4]}
              v_mul_f32 {z[1]}, {sg}{z[1]}, {t[4]}''')
    M += L(f'''v_readlane_b32 {sT[0]}, {t[3]}, 63
          v_mov_b32 {t[6]}, 0x3c00
          v_accvgpr_write_b32 {AG(KA + KG_E, 1)}, {t[6]}
          s_lshr_b32 {sT[0]}, {sT[0]}, 23
          s_max_u32 {sT[0]}, {sT[0]}, 20
          s_min_u32 {sT[0]}, {sT[0]}, 240
          s_sub_u32 {sT[1]}, 264, {sT[0]}
          s_lshl_b32 {sT[1]}, {sT[1]}, 23
          s_sub_u32 {sT[0]}, {sT[0]}, 9
          s_lshl_b32 {k.sKinv}, {sT[0]}, 23
          v_mul_f32 {g[0]}, {sT[1]}, {g[0]}
          v_mul_f32 {g[1]}, {sT[1]}, {g[1]}''')
    G = lambda b: g[2 * b:2 * b + 2]
    def out(row, x, n=3):
        r = pkr[n]
        return [f'v_cvt_pk_f16_f32 {r}, {x[0]}, {x[1]}', f'v_accvgpr_write_b32 {AG(KA + row, 1)}, {r}']
    def cm(d, x, y, tt):
        return [f'v_pk_mul_f32 {tt}, {x}, {y} op_sel:[0,0] op_sel_hi:[0,1]', f'v_pk_fma_f32 {d}, {x}, {y}, {tt} op_sel:[1,1,0] op_sel_hi:[1,0,1] neg_lo:[1,0,0]']
    M += out(KG_E + 1, z8, 0) + out(KG_E + 2, z16, 1) + out(0, G(0), 2)
    ech = [[], []]
    for c in range(3, 32):
        dst = e1 if c & 1 else e0
        src = (z8 if c == 3 else z16 if c == 4 else dst)
        ech[c & 1].append(cm(dst, src, z16, tm[2+2*(c&1):4+2*(c&1)]) + out(KG_E + c, dst, c & 1))
    gch = [cm(G(b), G(b - 1), z1, tm[0:2]) + out(b, G(b), 2) for b in range(1, 8)]
    for m in range(1, 9):
        bs = (0, 2, 4, 6) if m == 1 else (0, 4) if m < 4 else (0,)
        for b in bs:
            row = 8 + b // 2 if m == 1 else 12 + 2 * (m - 2) + b // 4 if m < 4 else 12 + m
            gch.append(cm(G(b), G(b), z2, tm[0:2]) + out(row, G(b), 2))
    ch = [ech[1], gch, ech[0]]
    while any(ch):
        cur = [c.pop(0) for c in ch if c]
        M += [i_ for pr in zip(*cur) for i_ in pr]
    weave(a, M, side, int(os.environ.get('W1E', 12)), int(os.environ.get('W1S', 0)))
    v.release(z1, z8, z2, z16, g, tm, e0, e1, pkr, par[0:4], par[6:8])

def p1(k):
    a, v, s = k.a, k.v, k.s
    vL, sT, sOnes = k.vL, k.sT, k.sOnes
    wt = k.wt
    BK = v.alloc('BK', 64); SQ = v.alloc('SQ', 4); X = v.alloc('X', 4); k.U8 = U8 = v.alloc('U8', 8)
    a(f'v_mov_b32 {SQ[0]}, 0\nv_mov_b32 {SQ[1]}, 0\nv_mov_b32 {SQ[2]}, 0\nv_mov_b32 {SQ[3]}, 0')
    a.wait_vm(k.utok); a.barrier()
    k.T()
    rd = [f'ds_read_b128 {BK[4*q:4*q+4]}, {k.vB[(2*q)&7]} offset:{(q>>2)*UKC}' for q in range(16)]
    main = rd[:6] + [f'ds_read_b128 {X}, {k.vXE[0]}']
    for q in range(16):
        for d in range(4):
            main += [f'v_dot2c_f32_bf16 {SQ[0]}, {sOnes}, {BK[4*q+d]}', f'v_dot2c_f32_bf16 {SQ[1]}, {BK[4*q+d]}, {BK[4*q+d]}']
        if q + 6 < 16: main.append(rd[q + 6])
        if q == 10: main += [f'ds_read_b64 {U8[2*jj:2*jj+2]}, {k.vUo[jj]}' for jj in range(4)]
        if q == 3:
            for d in range(4): main += [f'v_dot2c_f32_bf16 {SQ[2]}, {sOnes}, {X[d]}', f'v_dot2c_f32_bf16 {SQ[3]}, {X[d]}, {X[d]}']
        if q in (5, 6, 7, 8):
            sh = 1 << (q - 5)
            main += [f'v_add_f32_dpp {SQ[z]}, {SQ[z]}, {SQ[z]} row_shr:{sh} row_mask:0xf bank_mask:0xf bound_ctrl:0' for z in (2, 3)]
    zero = v.alloc('zero')
    side = [
                      f'v_mov_b32 {zero}, 0'] + ([] if FAST else [f'global_load_dwordx2 {k.vNonce}, {zero}, {k.kc[2:4]} sc1'])
    w3 = k.w3
    P1S = [int(x) for x in os.environ.get('P1S', '2,12,22').split(',') if x]
    if k.NP: side = w3.fill_items() + side
    weave(a, main, side, 11, 8)
    a(f's_mov_b64 exec, {k.sXM}\nds_write_b64 {k.vXE[1]}, {SQ[2:4]}\ns_mov_b64 exec, -1\nds_write_b64 {k.vSW}, {SQ[0:2]}')
    v.release(X, SQ, k.vXE, k.vSW, k.vUo); s.release(k.sXM)
    acc = v.alloc('acc1', 16); csa = v.alloc('csa', 4)
    DA = 6; Af = v.alloc('Af', 4 * DA); Bo = v.alloc('Bo', 12)
    a.wait_vm(wt[1]); a.barrier()
    k.T()
    tokA = {}
    def rdk(ks):
        q = ks % DA
        ad = k.vAo if ks & 1 else k.vAe
        if ks & 1: a(f'ds_read_b128 {Bo[4*((ks>>1)%3):4*((ks>>1)%3)+4]}, {k.vB[ks&7]} offset:{(ks>>3)*UKC}')
        a(f'ds_read_b64_tr_b16 {Af[4*q:4*q+2]}, {ad} offset:{ks*2048}')
        tokA[ks] = a(f'ds_read_b64_tr_b16 {Af[4*q+2:4*q+4]}, {ad} offset:{ks*2048+512}')
    sg = v.alloc('sg', 8); su = v.alloc('su', 8); k.XN = XN = v.alloc('acc', 16); xp = v.alloc('xp', 8)
    F = Fill(a)
    F.add([f'ds_read_b128 {sg[0:4]}, {k.vSG}', f'ds_read_b128 {sg[4:8]}, {k.vSG} offset:16', f'ds_read_b128 {su[0:4]}, {k.vSU}', f'ds_read_b128 {su[4:8]}, {k.vSU} offset:16'])
    F.add([f'v_lshlrev_b32 {XN[2*p]}, 16, {U8[p]}' for p in range(8)] + [f'v_and_b32 {XN[2*p+1]}, 0xffff0000, {U8[p]}' for p in range(8)])
    for x in (su, sg):
        F.add(L(f'''v_add_f32 {x[0]}, {x[0]}, {x[2]}
              v_add_f32 {x[1]}, {x[1]}, {x[3]}
              v_add_f32 {x[4]}, {x[4]}, {x[6]}
              v_add_f32 {x[5]}, {x[5]}, {x[7]}
              v_add_f32 {x[0]}, {x[0]}, {x[4]}
              v_add_f32 {x[1]}, {x[1]}, {x[5]}
              v_mul_f32 {x[0]}, {k.sI512}, {x[0]}
              v_mul_f32 {x[2]}, {x[0]}, {x[0]}
              v_fma_f32 {x[1]}, {x[1]}, {k.sI512}, -{x[2]}
              v_max_f32 {x[1]}, 0, {x[1]}
              v_add_f32 {x[2]}, {k.sEps}, {x[1]}
              v_rsq_f32 {x[2]}, {x[2]}'''))
    F.add(L(f'''v_mul_f32 {su[3]}, {su[0]}, {su[2]}
          v_mul_f32 {sg[3]}, {sg[2]}, {sg[2]}
          v_fma_f32 {sg[3]}, {sg[3]}, {sg[1]}, {k.sEps}
          v_rsq_f32 {sg[3]}, {sg[3]}
          v_sub_f32 {sg[0]}, 0, {sg[0]}
          v_mul_f32 {sg[2]}, {sg[2]}, {sg[3]}
          v_rcp_f32 {sg[1]}, {sg[2]}
          v_mul_f32 {sg[4]}, {k.sC0}, {sg[2]}
          v_mul_f32 {sg[5]}, {sg[2]}, {sg[2]}
          v_mul_f32 {sg[5]}, {sg[5]}, {sg[2]}
          v_mul_f32 {sg[5]}, {k.sC1}, {sg[5]}'''))
    F.add([f'v_fma_f32 {XN[p]}, {XN[p]}, {su[2]}, -{su[3]}' for p in range(16)])
    F.add([f'v_cvt_pk_bf16_f32 {xp[p]}, {XN[2*p]}, {XN[2*p+1]}' for p in range(8)])
    F.add([f'ds_write_b64 {k.vXW}, {xp[2*jj:2*jj+2]} offset:{16*jj}' for jj in range(4)])
    F.add([f'ds_read_b64_tr_b16 {xp[4*rho+2*io:4*rho+2*io+2]}, {k.vXR} offset:{72*(16*rho+4*io)}' for rho in range(2) for io in range(2)])
    F.add([f'ds_write_b128 {k.vXT}, {xp[4*rho:4*rho+4]} offset:{32*rho}' for rho in range(2)])
    dq = deque()
    for ks in range(DA - 1): rdk(ks)
    for ks in range(32):
        if ks == 16 - DA + 1:
            a.wait_vm(wt[3]); a.barrier(lg=False)
        if ks in (1, 9) and os.environ.get('T3'):
            a(f'''s_lshl_b32 {sT[0]}, {k.sY}, 2
                  s_add_u32 {sT[0]}, {sT[0]}, {k.sW}
                  s_mul_i32 {sT[0]}, {sT[0]}, {56 * 128}
                  s_add_u32 {sT[0]}, {sT[0]}, {7168 * 128 if ks == 9 else 0}
                  v_lshlrev_b32 {k.junk}, 7, {vL}
                  s_mov_b32 exec_hi, 0xffffff''')
            a.touch(f'buffer_load_dword {k.junk}, {k.junk}, {k.sW3}, {sT[0]} offen')
            a('s_mov_b32 exec_hi, -1')
        if ks == 17:
            a.barrier(lg=False); k.w2t = {}; k.w2side = w_dma_items(k, k.sW2, k.w2t, k.sW2o); dq.extend(k.w2side[:10])
        if ks == 20 and FAST: a(f'global_load_dwordx2 {k.vNonce}, {zero}, {k.kc[2:4]} sc1\nglobal_load_dword {k.vGw[1]}, {k.vGw[0]}, {k.kc[2:4]} offset:128 sc1')
        if ks in P1S: dq.extend((w3.cons_items() if w3.nc < w3.nf else []) + (w3.fill_items() if w3.nf < k.NP else []))
        if ks % 2 == 0: a.wait_lg(tokA[min(ks + 1, 31)])
        q = ks % DA
        B = Bo[4*((ks>>1)%3):4*((ks>>1)%3)+4] if ks & 1 else BK[2*ks:2*ks+4]
        a(f'v_mfma_f32_32x32x16_bf16 {acc}, {Af[4*q:4*q+4]}, {B}, {acc if ks else 0}')
        if ks + DA - 1 < 32: rdk(ks + DA - 1)
        if dq:
            x = dq.popleft(); put(a, x)
            if cost(x) == 4 and dq: put(a, dq.popleft())
            F.gap(2)
        else: F.gap(10)
        a(f'v_mfma_f32_16x16x32_bf16 {csa}, {Af[4*q:4*q+4]}, {k.B16}, {csa if ks else 0}')
        F.gap(8)
    F.flush()
    while dq: put(a, dq.popleft())
    k.T()
    v.release(BK, Bo, k.vB, k.vAe, k.vAo, k.vSG, k.vSU, k.vXW, k.vXR)
    cs = v.alloc('cs', 16); hp = v.alloc('hp', 8); xq = v.alloc('xq', 8); xa = v.alloc('xa')
    a(f's_mov_b32 exec_lo, 0x01010101\ns_mov_b32 exec_hi, 0x01010101\nds_write_b128 {k.vCW}, {csa}\ns_mov_b64 exec, -1')
    for jj in range(4): a(f'ds_read_b128 {cs[4*jj:4*jj+4]}, {k.vCR} offset:{32*jj}')
    a(f"""v_lshrrev_b32 {xa}, 3, {vL}
          v_and_b32 {xq[0]}, 3, {vL}
          v_lshlrev_b32 {xq[0]}, 4, {xq[0]}
          v_mul_u32_u24 {xa}, 80, {xa}
          v_bfe_u32 {xq[1]}, {vL}, 2, 1
          v_mul_u32_u24 {xq[1]}, {2 * XSW}, {xq[1]}
          s_mul_i32 {sT[4]}, {k.sA}, {16 * 80}
          s_mul_i32 {sT[3]}, {k.sB}, {XSW}
          s_add_u32 {sT[4]}, {sT[4]}, {sT[3]}
          s_add_u32 {sT[4]}, {sT[4]}, {L_XS}
          v_add_u32 {xa}, {xa}, {xq[1]}
          v_add3_u32 {xa}, {xa}, {xq[0]}, {sT[4]}""")
    ok = a.label_name('NK'); lp = a.label_name('NL')
    gw = FAST
    chk = f"""v_readfirstlane_b32 {k.sNonce[0]}, {k.vNonce[0]}
          v_readfirstlane_b32 {k.sNonce[1]}, {k.vNonce[1]}
          s_mov_b32 {sT[2]}, {k.sNonce[0]}""" if not gw else f"""v_readfirstlane_b32 {k.sNonce[0]}, {k.vNonce[0]}
          v_readfirstlane_b32 {sT[1]}, {k.vGw[1]}
          v_readfirstlane_b32 {k.sNonce[1]}, {k.vNonce[1]}
          s_and_b32 {sT[2]}, {sT[1]}, 0x88888888
          s_cmp_eq_u32 {sT[2]}, 0x88888888
          s_cselect_b32 {sT[2]}, {k.sNonce[0]}, 0"""
    a(chk + f'\ns_cmp_lg_u32 {sT[2]}, 0')
    a.raw(f's_cbranch_scc1 {ok}')
    a.raw(f's_mov_b32 {sT[0]}, 0')
    a.label(lp)
    for x in L(f"""global_load_dwordx2 {k.vNonce}, {zero}, {k.kc[2:4]} sc1
          {f'global_load_dword {k.vGw[1]}, {k.vGw[0]}, {k.kc[2:4]} offset:128 sc1' if gw else ''}
          s_add_u32 {sT[0]}, {sT[0]}, 1
          s_waitcnt vmcnt(0)
          {chk}
          s_cmp_gt_u32 {sT[0]}, 0x40000
          s_cbranch_scc1 {ok}
          s_cmp_eq_u32 {sT[2]}, 0
          s_cbranch_scc1 {lp}"""): a.raw(x)
    a.label(ok)
    if gw: a(f's_xor_b32 {k.sSlow}, {k.sSlow}, {sT[1]}'); v.release(k.vGw)
    a.barrier()
    k.T()
    a(f'ds_read_b128 {xq[0:4]}, {xa}\nds_read_b128 {xq[4:8]}, {xa} offset:{8 * 80}')
    side = k.w2side
    def xst(): k.xttok = a(f'buffer_store_dwordx4 {xq[4:8]}, {k.vL16}, {k.sWS}, {k.sXo} offen offset:1024 sc1')
    xs = [f'buffer_store_dwordx4 {xq[0:4]}, {k.vL16}, {k.sWS}, {k.sXo} offen sc1', (xst, 8)]
    ops = k.gelu_ops(acc, cs, (sg[0:2], 0), (sg[4:6], 0), (sg[4:6], 1), (sg[0:2], 1), hp, Af)
    h = len(ops) // 2
    weave(a, ops[:h], side[10:] + xs, 3)
    k.st(f'buffer_store_dwordx4 {hp[0:4]}, {k.vL16}, {k.sWS}, {k.sHo} offen')
    for x in ops[h:]: a(x)
    k.htok = k.st(f'buffer_store_dwordx4 {hp[4:8]}, {k.vL16}, {k.sWS}, {k.sHo} offen offset:1024')
    k.T()
    v.release(acc, csa, Af, sg, su, xp, cs, hp, zero, k.vXT, xq, xa); s.release(k.sXo, k.sW2o)

from phases_b import *
STEPS = [prologue, lambda k: None, p1, edge1, p2, edge2, p3, p4]
```

```python
from util import *

def edge1(k):
    a, v, s = k.a, k.v, k.s
    vL, sT, sA, sB, sW, sJ, sI = k.vL, k.sT, k.sA, k.sB, k.sW, k.sJ, k.sI
    w2t = k.w2t
    t = v.alloc('t', 8); k.e1t = t
    w3 = k.w3; NE = k.NE
    vKW = v.alloc('vKW', 4); vG = v.alloc('vG'); vE = v.alloc('vE')
    M = L(f"""s_mul_i32 {sT[2]}, {sB}, {KG_CH}
          s_lshl_b32 {sT[3]}, {sA}, 8
          s_add_u32 {sT[3]}, {sT[3]}, {sT[2]}
          v_lshl_add_u32 {vKW[0]}, {vL}, 2, {sT[3]}
          v_xor_b32 {vKW[1]}, 64, {vKW[0]}
          v_xor_b32 {vKW[2]}, 128, {vKW[0]}
          v_xor_b32 {vKW[3]}, 192, {vKW[0]}""")
    M += [f'ds_write2st64_b32 {vKW[r & 3]}, {AG(KA + 2*r, 1)}, {AG(KA + 2*r + 1, 1)} offset0:{4*r} offset1:{4*r+2}' for r in range(27)]
    M += L(f"""v_and_b32 {t[1]}, 15, {vL}
          v_lshrrev_b32 {t[2]}, 4, {vL}
          v_lshlrev_b32 {t[3]}, 9, {t[1]}
          v_lshl_add_u32 {t[3]}, {t[2]}, 4, {t[3]}
          v_add_u32 {t[3]}, {sT[2]}, {t[3]}
          v_lshlrev_b32 {t[4]}, 5, {t[1]}
          v_and_b32 {vG}, 192, {t[4]}
          v_add_u32 {vG}, {vG}, {t[3]}
          v_add_u32 {t[4]}, {(KG_E >> 1) << 6}, {t[4]}
          v_and_b32 {vE}, 192, {t[4]}
          s_lshl_b32 {sT[0]}, {sA}, 13
          v_add3_u32 {vE}, {vE}, {t[3]}, {sT[0]}
          s_lshl_b32 {sT[0]}, {sA}, 4
          v_add_u32 {t[1]}, {sT[0]}, {t[1]}
          s_mul_i32 {sT[1]}, {sB}, {KTS}
          s_add_u32 {sT[1]}, {sT[1]}, {L_KT}
          v_max_u32 {t[3]}, 1, {t[2]}
          v_sub_u32 {t[3]}, 6, {t[3]}
          v_lshlrev_b32 {t[3]}, {t[3]}, {t[1]}
          v_cmp_gt_u32 vcc, 32, {vL}
          v_lshlrev_b32 {t[4]}, 4, {t[2]}
          v_lshlrev_b32 {t[5]}, 9, {t[2]}
          v_cndmask_b32 {t[4]}, {t[5]}, {t[4]}, vcc
          v_add3_u32 {t[4]}, {t[4]}, {t[3]}, {sT[1]}
          v_lshl_add_u32 {t[6]}, {t[1]}, 2, {t[5]}
          v_add_u32 {t[6]}, {sT[1]}, {t[6]}
          v_cmp_gt_u32 vcc, 48, {vL}
          v_mov_b32 {t[5]}, 0x100
          s_lshl_b32 {sT[0]}, {sA}, 6
          v_cndmask_b32 {t[5]}, {t[5]}, 8, vcc
          v_add_u32 {t[5]}, {t[5]}, {t[4]}
          v_xor_b32 {t[0]}, {sT[0]}, {k.vTr}
          v_add_u32 {t[0]}, {L_W}, {t[0]}
          s_lshl_b32 {sT[4]}, {sJ}, {FSR}
          s_add_u32 {sT[4]}, {sT[4]}, {k.sFr}""")
    while w3.nc < w3.nf: M += w3.cons_items()
    for x in M: put(a, x)
    a.wait_vm(k.htok); a.barrier(); k.flag_store(sT[4], True)
    a(f's_lshl_b32 {sT[4]}, {sI}, {FSC}\ns_add_u32 {sT[4]}, {sT[4]}, {k.sFc}'); k.flag_store(sT[4])
    k.T()
    Kf = v.alloc('Kf', 48); D = v.alloc('D', 8); vK = v.alloc('vK', 6)
    for x in range(1, 4): a(f'v_xor_b32 {vK[2*x-2]}, {64*x}, {vG}\nv_xor_b32 {vK[2*x-1]}, {64*x}, {vE}')
    def krd(kk):
        o = 12 * (kk % 4); g_, e_ = (vG, vE) if kk & 3 == 0 else (vK[2*(kk&3)-2], vK[2*(kk&3)-1])
        a(f'ds_read_b128 {Kf[o:o+4]}, {e_} offset:{KG_E * KG_R + 256 * (kk >> 2)}')
        for tau in range(2): a(f'ds_read_b128 {Kf[o+4+4*tau:o+8+4*tau]}, {g_} offset:{16 * tau * KG_R + 256 * (kk >> 2)}')
    for kk in range(4): krd(kk)
    rest = deque()
    if NE > k.NP: rest.extend(w3.fill_items())
    for kk in range(8):
        o = 12 * (kk % 4)
        for tau in range(2):
            d = D[4*tau:4*tau+4]
            a(f'v_mfma_f32_16x16x32_f16 {d}, {Kf[o+4+4*tau:o+8+4*tau]}, {Kf[o:o+4]}, {d if kk else 0}')
            if rest: put(a, rest.popleft())
        if kk + 4 < 8: krd(kk + 4)
    k.vP8 = v.alloc('vP8'); k.vP32 = v.alloc('vP32')
    a(f"""v_min_u32 {k.vP8}, 7, {vL}
          v_lshlrev_b32 {k.vP8}, {FSR}, {k.vP8}
          v_lshlrev_b32 {k.vP32}, {FSC}, {k.vTt}
          v_mov_b32 {Kf[0]}, 0
          v_mov_b32 {Kf[1]}, 0
          v_mov_b32 {Kf[2]}, 0
          v_mov_b32 {Kf[3]}, 0
          v_mov_b32 {Kf[4]}, {L_UC}""")
    while rest: put(a, rest.popleft())
    k.PP = os.environ.get('PP', 'b2')
    if k.PP == 'e1': k.p1r = k.poll_issue(k.vP8, k.sFr)
    a(f"""s_mov_b64 exec, 1
          ds_write_b128 {Kf[4]}, {Kf[0:4]}
          ds_write_b128 {Kf[4]}, {Kf[0:4]} offset:{KTS}
          s_mov_b64 exec, -1""")
    for q in range(8): a(f'v_mul_f32 {D[q]}, {k.sKinv}, {D[q]}')
    a(f'ds_write_b64 {t[4]}, {D[0:2]}\nds_write_b64 {t[5]}, {D[2:4]}\ns_mov_b32 exec_hi, 0')
    for r in range(4): a(f'ds_write_b32 {t[6]}, {D[4+r]} offset:{2048+128*r}')
    a(f"""s_mov_b32 exec_hi, -1
          s_lshl_b32 {sT[1]}, {sB}, 15
          s_lshl_b32 {sT[2]}, {sA}, 12
          s_add_u32 {sT[1]}, {sT[1]}, {sT[2]}
          s_lshl_b32 {sT[2]}, {sI}, 16
          s_lshl_b32 {sT[3]}, {sB}, 15
          s_add_u32 {sT[2]}, {sT[2]}, {sT[3]}
          s_and_b32 {sT[5]}, {sJ}, {7 if ROT & 1 else 0}
          s_add_u32 {sT[5]}, {sT[5]}, {sA}
          s_lshl_b32 {sT[5]}, {sT[5]}, 12
          v_add_u32 {t[1]}, {sT[3]}, {k.vL16}""")
    v.release(Kf, D, vG, vE, vK, vKW); s.release(k.sKinv)
    a.wait_vm(w2t[3]); a.barrier()
    k.T()

def p2(k):
    a, v, s = k.a, k.v, k.s
    vL, sT, sA, sB, sW, sJ, sI = k.vL, k.sT, k.sA, k.sB, k.sW, k.sJ, k.sI
    t = k.e1t; w3 = k.w3
    NE = k.NE
    k.W2F = W2F = v.alloc('W2F', 128); V = v.alloc('V', 18, 1); vW2 = V[0]
    a(f'v_mov_b32 {vW2}, {t[0]}')
    rdl = [f'ds_read_b32 {V[9*ch+q]}, {k.GA[q]} offset:{ch * KTS}' for ch in range(2) for q in range(9)]
    for ks in range(32):
        rdl.append(f'ds_read_b64_tr_b16 {W2F[4*ks:4*ks+2]}, {vW2} offset:{ks*2048}')
        rdl.append(f'ds_read_b64_tr_b16 {W2F[4*ks+2:4*ks+4]}, {vW2} offset:{ks*2048+1024}')
    NR0 = int(os.environ.get('NR0', 16))
    for x in rdl[18:18+NR0]: a(x)
    side = []
    while w3.nf < NE: side += w3.cons_items() + w3.fill_items()
    NB = 5; P = v.alloc('P', 8); vCP = v.alloc('vCP', 2)
    cpw = []
    for ch in range(2):
        for mu in range(2):
            p = P[4*mu:4*mu+4]
            cpw += [f'v_cvt_pk_bf16_f32 {p[q]}, {V[9*ch+1-mu+2*q]}, {V[9*ch+2-mu+2*q]}' for q in range(4)]
            cpw.append(f'ds_write_b128 {vCP[0]}, {p} offset:{ch*2*CS + mu*CS}')
    k.cA = vA = v.alloc('cA'); k.cB = vB = v.alloc('cB'); k.cS = cS = v.alloc('cS'); vSt = v.alloc('vSt'); sSt = s.alloc('sSt'); sUC = s.alloc('sUC', 2)
    main = L(f'''v_lshrrev_b32 {t[2]}, 1, {vL}
          v_mul_u32_u24 {t[2]}, {CS}, {t[2]}
          v_and_b32 {t[3]}, 1, {vL}
          v_lshl_add_u32 {t[2]}, {t[3]}, 4, {t[2]}
          v_add_u32 {vCP[1]}, {L_CP + 4096}, {t[2]}
          v_lshlrev_b32 {t[0]}, 4, v0
          v_add_u32 {vCP[0]}, {L_CP}, {t[0]}
          v_mov_b32 {t[4]}, 0
          v_mov_b32 {t[5]}, 0
          v_mov_b32 {t[6]}, 0
          v_mov_b32 {t[7]}, 0''')
    main += L(f"""v_and_b32 {t[0]}, 1, {vL}
          v_mul_u32_u24 {t[0]}, {CS}, {t[0]}
          v_bfe_u32 {t[3]}, {vL}, 1, 3
          v_lshlrev_b32 {t[3]}, 2, {t[3]}
          v_sub_u32 {t[0]}, {t[0]}, {t[3]}
          v_lshrrev_b32 {t[2]}, 4, {vL}
          v_lshl_add_u32 {t[0]}, {t[2]}, 4, {t[0]}
          s_mul_i32 {sT[0]}, {sB}, {2 * CS}
          s_lshl_b32 {sT[4]}, {sA}, 8
          s_sub_u32 {sT[0]}, {sT[0]}, {sT[4]}
          s_add_u32 {sT[0]}, {sT[0]}, {L_CP + 28}
          v_add_u32 {vA}, {sT[0]}, {t[0]}
          v_and_b32 {t[3]}, 15, {vL}
          v_lshlrev_b32 {t[3]}, 5, {t[3]}
          v_lshl_add_u32 {t[0]}, {t[2]}, 4, {t[3]}
          s_mul_i32 {sUC[1]}, {sB}, {UCS}
          s_sub_u32 {sT[0]}, {sUC[1]}, {sT[4]}
          s_add_u32 {sT[0]}, {sT[0]}, {L_UC + UCP - 480}
          v_add_u32 {vB}, {sT[0]}, {t[0]}
          v_lshl_add_u32 {cS}, {t[2]}, 3, {t[3]}
          v_lshlrev_b32 {vSt}, 2, {vL}
          s_lshl_b32 {sSt}, {sI}, 13
          s_lshl_b32 {sT[0]}, {sJ}, 10
          s_add_u32 {sSt}, {sSt}, {sT[0]}
          s_lshl_b32 {sT[0]}, {sA}, 9
          s_add_u32 {sSt}, {sSt}, {sT[0]}
          s_lshl_b32 {sT[0]}, {sB}, 8
          s_add_u32 {sSt}, {sSt}, {sT[0]}
          s_add_u32 {sSt}, {sSt}, {WS_STAT}
          s_mul_i32 {sUC[0]}, {sJ}, {32 * XTT}
          s_and_b32 {sT[0]}, {k.sD}, 63
          s_lshl_b32 {sT[0]}, {sT[0]}, 7
          s_add_u32 {sUC[0]}, {sUC[0]}, {sT[0]}
          s_add_u32 {sUC[0]}, {sUC[0]}, {WS_XT}
          v_lshrrev_b32 {t[0]}, 3, {vL}
          v_mul_u32_u24 {t[0]}, {XTT}, {t[0]}
          v_and_b32 {t[3]}, 7, {vL}
          v_lshl_add_u32 {t[3]}, {t[3]}, 4, {t[0]}
          v_add_u32 {t[2]}, {L_UC}, {k.vL16}
          s_add_u32 {sT[3]}, {k.sHo}, {WS_X1}
          s_lshl_b32 {sT[4]}, {sJ}, {FSR}
          s_add_u32 {sT[4]}, {sT[4]}, {k.sFr}
          s_add_u32 {sT[4]}, {sT[4]}, {F2}""")
    weave(a, main, rdl[18+NR0:], 1)
    if k.PP == 'b2': k.p1r = k.poll_issue(k.vP8, k.sFr, 'pollx')
    for x in side: put(a, x)
    a.barrier()
    if k.PP == 'b3': k.p1r = k.poll_issue(k.vP8, k.sFr, 'pollx')
    if FINE: k.T()
    for x in rdl[:18]: a(x)
    v.release(k.GA)
    k.poll_check(k.p1r)
    k.T()
    pc = k.poll_issue(k.vP32, k.sFc)
    toks = {}
    sH2 = s.alloc('sH2'); side = []
    for c in range(4):
        side.append((lambda c=c: a(f's_add_u32 m0, {sT[1]}, {c * 8192}\ns_add_u32 {sH2}, {sT[5]}, {c * 8192}\ns_and_b32 {sH2}, {sH2}, 0x7fff\ns_add_u32 {sH2}, {sH2}, {sT[2]}'), 16))
        for e in range(4):
            def f(c=c, e=e): toks[c] = a(f'buffer_load_dwordx4 {k.vL16}, {k.sWS}, {sH2} offen offset:{1024*e} lds')
            side.append((f, 8))
    NCP = int(os.environ.get('NCP', 20))
    for x in side[:10] + cpw[:NCP] + side[10:]: put(a, x)
    s.release(sH2)
    Bl = [v.alloc(f'Bf{q}', 4) for q in range(NB)]
    if FINE == '2': k.T()
    X = k.XN
    tok = {}
    def rd(ks): tok[ks] = a(f'ds_read_b128 {Bl[ks%NB]}, {t[1]} offset:{ks*1024}')
    F = Fill(a)
    a.wait_vm(toks[0]); a.barrier()
    k.T()
    F.add(cpw[NCP:])
    def cpz(): k.cptok = a(f's_mov_b64 exec, 0xff\nds_write_b128 {vCP[1]}, {t[4:8]}'); a('s_mov_b64 exec, -1')
    F.add([(cpz, 12)])
    F.add([(lambda: a(f's_mov_b32 exec_hi, 0x3fffffff\nds_write_b128 {t[2]}, {t[4:8]}\nds_write_b128 {t[2]}, {t[4:8]} offset:{UCS}\ns_mov_b32 exec_hi, -1'), 16)])
    for ks in range(NB - 1): rd(ks)
    UP = int(os.environ.get('UP', 1)); dq = deque()
    FA = [int(x) for x in os.environ.get('FA', '7,13').split(',') if x]
    CA = [int(x) for x in os.environ.get('CA', '19').split(',') if x]
    def ucd(e):
        k.uct = a(f'buffer_load_dwordx4 {t[3]}, {k.sWS}, {sUC[0]} offen offset:{1024*e} lds')
        if e < 3: a(f's_add_u32 {sUC[0]}, {sUC[0]}, {8 * XTT - 1024}')
    for ks in range(32):
        nx = ks + NB - 1
        if nx == 24: a.wait_lg(k.cptok)
        if nx < 32 and nx % 8 == 0:
            a.wait_vm(toks[nx // 8]); a.barrier(lg=False)
            if FINE == '2': k.T()
        if ks % 2 == 0: a.wait_lg(tok[ks + 1])
        a(f'v_mfma_f32_32x32x16_bf16 {X}, {k.W2F[4*ks:4*ks+4]}, {Bl[ks%NB]}, {X}')
        if nx < 32: rd(nx)
        if ks == UP:
            k.poll_check(pc)
            dq.extend([f's_add_u32 m0, {sUC[1]}, {L_UC + UCP}'] + [(lambda e=e: ucd(e), 8) for e in range(4)])
        if ks in FA: dq.extend(w3.fill_items())
        if ks in CA: dq.extend(w3.cons_items() + w3.fill_items())
        if dq:
            x = dq.popleft(); put(a, x)
            if cost(x) == 4 and dq: put(a, dq.popleft())
            F.gap(12)
        else: F.gap(20)
    v.release(k.W2F, V, P, vCP, *Bl)
    k.cs3a = v.alloc('cs3a', 8); k.ncs3 = 0
    F.flush()
    while dq: put(a, dq.popleft())
    k.T()
    xp = v.alloc('xp', 8); SQ = v.alloc('SQ', 2)
    a(f'v_mov_b32 {SQ[0]}, 0\nv_mov_b32 {SQ[1]}, 0')
    for q in range(4): a(f'v_cvt_pk_bf16_f32 {xp[q]}, {X[2*q]}, {X[2*q+1]}')
    k.st(f'buffer_store_dwordx4 {xp[0:4]}, {k.vL16}, {k.sWS}, {sT[3]} offen')
    for q in range(4, 8): a(f'v_cvt_pk_bf16_f32 {xp[q]}, {X[2*q]}, {X[2*q+1]}')
    k.st(f'buffer_store_dwordx4 {xp[4:8]}, {k.vL16}, {k.sWS}, {sT[3]} offen offset:1024')
    for q in range(8): a(f'v_dot2c_f32_bf16 {SQ[0]}, {k.sOnes}, {xp[q]}\nv_dot2c_f32_bf16 {SQ[1]}, {xp[q]}, {xp[q]}')
    a(f'v_permlane32_swap_b32 {SQ[0]}, {SQ[1]}\nv_add_f32 {SQ[0]}, {SQ[0]}, {SQ[1]}')
    k.x1tok = k.st(f'buffer_store_dword {SQ[0]}, {vSt}, {k.sWS}, {sSt} offen')
    k.T()
    v.release(xp, SQ, vSt); s.release(sSt, sUC)

def x1_start(k):
    a, v, s = k.a, k.v, k.s
    sT, sI = k.sT, k.sI
    sX1 = s.alloc('sX1', 3, 1)
    a(f"""s_lshl_b32 {sX1[0]}, {k.sRot}, 11
          s_add_u32 {sX1[0]}, {sX1[0]}, {k.sW12}
          s_and_b32 {sX1[0]}, {sX1[0]}, 0x7fff
          s_xor_b32 {sX1[1]}, {sX1[0]}, 0x4000
          s_lshl_b32 {sX1[2]}, {sI}, 16
          s_add_u32 {sX1[0]}, {sX1[0]}, {sX1[2]}
          s_add_u32 {sX1[1]}, {sX1[1]}, {sX1[2]}""")
    k.poll_check(k.p2r)
    k.T()
    toks = {}
    side = []
    for c in range(4):
        side.append((lambda c=c: a(f's_add_u32 m0, {k.sW12}, {c * 16384}\ns_add_u32 {sX1[2]}, {sX1[c & 1]}, {WS_X1 + (c >> 1) * 32768}'), 8))
        for e in range(4):
            def f(c=c, e=e): toks[c] = a(f'buffer_load_dwordx4 {k.vL16}, {k.sWS}, {sX1[2]} offen offset:{1024*e} lds')
            side.append((f, 8))
    def sd0(): a(f's_lshl_b32 {sX1[2]}, {k.sW}, 11\ns_add_u32 m0, {sX1[2]}, 49152\ns_lshl_b32 {sT[0]}, {sI}, 13\ns_add_u32 {sX1[2]}, {sX1[2]}, {sT[0]}\ns_add_u32 {sX1[2]}, {sX1[2]}, {WS_STAT}')
    def sd(e): toks['s'] = a(f'buffer_load_dwordx4 {k.vL16}, {k.sWS}, {sX1[2]} offen offset:{1024*e} lds')
    k.x1 = (toks, side, sX1)
    return side[:5] + [(sd0, 20), (lambda: sd(0), 8), (lambda: sd(1), 8)] + side[5:10]

def edge2(k):
    a, v, s = k.a, k.v, k.s
    vL, sT, sA, sB, sW, sJ, sI = k.vL, k.sT, k.sA, k.sB, k.sW, k.sJ, k.sI
    t = k.e1t; w3 = k.w3; vA, vB, cS = k.cA, k.cB, k.cS
    k.Y = Y = v.alloc('Y', 32); Af = v.alloc('cAf', 64); Bf = v.alloc('cBf', 64); vA3 = v.alloc('vA3', 3, 1)
    for q in range(3): a(f'v_add_u32 {vA3[q]}, {1024 * (q + 1)}, {vA}')
    def loads(rho):
        bu = rho & 1; r = 32 * rho; O = []
        for i in range(8):
            O.append(f'ds_read_b128 {Bf[32*bu+4*i:32*bu+4*i+4]}, {vB} offset:{2 * (256 * i + 224 - r)}')
            d = Af[32*bu+4*i:32*bu+4*i+4]; o = 2 * (2016 - 256 * i - r)
            ad = vA if o < 1024 else vA3[(o >> 10) - 1]; o = (o & 1023) >> 2
            O += [f'ds_read2_b32 {d[0:2]}, {ad} offset0:{o} offset1:{o+1}', f'ds_read2_b32 {d[2:4]}, {ad} offset0:{o+2} offset1:{o+3}']
        return O
    XC = os.environ.get('XC', '')
    if 'n' in XC: loads = lambda rho: []
    a.wait_vm(k.uct)
    if FINE: k.T()
    for x in loads(0): a(x)
    first = set()
    CF = int(os.environ.get('CF', 32))
    CC = int(os.environ.get('CC', 108))
    CP_ = int(os.environ.get('CPI', 80))
    st = deque(cs3_items(k, 2 * w3.nc))
    CSS = [int(x) for x in os.environ.get('CSS', '8,24,40,56,72,88,124,136').split(',') if x]
    def more():
        n0 = w3.nc
        if w3.nc < 16: st.extend(w3.cons_items())
        if w3.nf < 16: st.extend(w3.fill_items())
        st.extend(cs3_items(k, 2 * n0))
    nm = 0
    for rho in range(4):
        bu = rho & 1
        nxt = deque(loads(rho + 1) if rho < 3 else [])
        mm = sorted([(i, nt) for nt in range(8) for i in range(nt + 1)], key=lambda x: (max(x[0], x[1] - x[0]), x[1]))
        for n_, (i, nt) in enumerate(mm):
            y = Y[4*nt:4*nt+4]; de = nt - i
            if 'm' not in XC or nt not in first: a(f'v_mfma_f32_16x16x32_bf16 {y}, {Af[32*bu+4*i:32*bu+4*i+4]}, {Bf[32*bu+4*de:32*bu+4*de+4]}, {y if nt in first else 0}')
            first.add(nt)
            if nm in CSS: more()
            if nxt and (n_ % 3 != 2 or not st): a(nxt.popleft())
            else:
                for _ in range(2):
                    if st: put(a, st.popleft())
            nm += 1
            if nm == CF:
                a.wait_vm(k.x1tok); a.barrier(lg=False); k.flag_store(sT[4], True)
                k.T()
            if nm == CP_:
                a(f's_add_u32 {sT[4]}, {k.sFr}, {F2}')
                k.p2r = k.poll_issue(k.vP8, sT[4])
            if nm == CC:
                while st: put(a, st.popleft())
                st.extend(x1_start(k))
        assert not nxt
    for _ in range(int(os.environ.get('NX', 1))): more()
    while st: put(a, st.popleft())
    v.release(Af, Bf, vA3)
    k.T()

def p3(k):
    a, v, s = k.a, k.v, k.s
    vL, sT, sA, sB, sW, sJ, sI = k.vL, k.sT, k.sA, k.sB, k.sW, k.sJ, k.sI
    t = k.e1t; w3 = k.w3; Y = k.Y; cS = k.cS
    toks, side, sX1 = k.x1
    xu = v.alloc('xu', 8); w = v.alloc('w', 16); KP = v.alloc('KP', 16); vEX = v.alloc('vEX', 3); sST = s.alloc('sST')
    a(f"""s_mul_i32 {sT[0]}, {sB}, {UCS}
          s_lshl_b32 {sT[1]}, {sA}, 11
          s_add_u32 {sT[0]}, {sT[0]}, {sT[1]}
          s_add_u32 {sT[0]}, {sT[0]}, {L_UC + UCP}
          v_add_u32 {t[0]}, {sT[0]}, {cS}""")
    for q in range(4): a(f'ds_read_b64 {xu[2*q:2*q+2]}, {t[0]} offset:{512 * q}')
    main = L(f"""s_mul_i32 {sST}, {k.sD}, {XTS}
          s_add_u32 {sST}, {sST}, {sT[1]}
          s_add_u32 {sST}, {sST}, {WS_ST}
          v_add_u32 {vEX[0]}, {w3.sM}, {k.vL16}
          s_xor_b32 {sT[0]}, {sW}, 1
          s_lshl_b32 {sT[0]}, {sT[0]}, 13
          s_add_u32 {sT[0]}, {sT[0]}, {L_STG}
          v_add_u32 {vEX[1]}, {sT[0]}, {k.vL16}
          v_add_u32 {vEX[2]}, {w3.sM}, {cS}
          s_cmp_eq_u32 {sA}, 0
          s_cselect_b64 vcc, -1, 0""")
    for q in range(16): main += [f'v_cndmask_b32 {KP[q]}, {Y[16+q]}, {Y[q]}, vcc', f'v_cndmask_b32 {Y[q]}, {Y[q]}, {Y[16+q]}, vcc']
    for q in range(8): main += [f'v_lshlrev_b32 {w[2*q]}, 16, {xu[q]}', f'v_and_b32 {w[2*q+1]}, 0xffff0000, {xu[q]}']
    for q in range(8): main.append(f'v_pk_fma_f32 {KP[2*q:2*q+2]}, {w[2*q:2*q+2]}, {k.vPar[4:6]}, {KP[2*q:2*q+2]} op_sel:[0,1,0] op_sel_hi:[1,1,1]')
    for x in glue(main): put(a, x)
    v.release(w, k.cA, k.cB, cS, k.vPar[4:6], Y[16:32])
    main = []
    while w3.nc < 16:
        n0 = w3.nc
        main += w3.cons_items()
        if w3.nf < 16: main += w3.fill_items()
        elif side[10]: main += side[10:15]; side[10] = None
        main += cs3_items(k, 2 * n0)
    if side[10]: main += side[10:15]
    for x in main: put(a, x)
    if FINE: k.T()
    for x in cs3_items(k, 32): a(x)
    for q in range(4): a(f'ds_write_b128 {vEX[0]}, {Y[4*q:4*q+4]}  offset:{1024*q}')
    w3.free(); v.release(k.vW3, k.w3x[1]); s.release(k.w3x[0])
    k.w4 = w4 = Stream(k, k.sW4, k.vWd, 14, 5, 1024, lambda q, ph: AG(8 * q + 4 * ph, 4))
    w4.perm = [0, 2, 4, 6, 7, 9, 11, 13, 1, 3, 5, 8, 10, 12]
    w4.sP = sP = s.alloc('sP', 14, 2)
    w4.freeq = deque(((w4.sM, w4.vA, 4096 * q), -1) for q in range(5))
    k.sF3 = sF3 = s.alloc('sF3', 2); k.sH4 = sH4 = s.alloc('sH4', 2); sB4 = s.alloc('sB4'); k.sT3 = sT3 = s.alloc('sT3')
    k.vB1 = v.alloc('vB4'); vB4a = v.alloc('vB4a', 2)
    sH3 = s.alloc('h3o'); vS1 = v.alloc('vS1')
    AC = v.alloc('AC', 8); BM = v.alloc('BM', 8)
    tA = sum(p_ << (4 * n_) for n_, p_ in enumerate(w4.perm[:8])); tB = sum(p_ << (4 * n_) for n_, p_ in enumerate(w4.perm[8:] + w4.perm[8:13]))
    ptab = L(f'''s_lshl_b32 {sT3}, {sI}, 1
          s_add_u32 {sT3}, {sT3}, {sJ}
          s_and_b32 {sT3}, {sT3}, {7 if ROT & 4 else 0}
          s_mov_b32 {sP[12]}, {hex(tA)}
          s_mov_b32 {sP[13]}, {hex(tA)}
          s_lshl_b32 {sP[0]}, {sT3}, 2
          s_lshr_b64 {sP[12:14]}, {sP[12:14]}, {sP[0]}''')
    for q in range(8): ptab += [f's_bfe_u32 {sP[q]}, {sP[12]}, {hex(4 * q | 4 << 16)}', f's_lshl_b32 {sP[q]}, {sP[q]}, 11']
    ptab += L(f'''s_mul_i32 {sT3}, {sT3}, 3
          s_and_b32 {sT3}, {sT3}, 0x1c
          s_mov_b32 {sP[12]}, {hex(tB & 0xffffffff)}
          s_mov_b32 {sP[13]}, {hex(tB >> 32)}
          s_lshr_b64 {sP[12:14]}, {sP[12:14]}, {sT3}
          s_mov_b32 {sT3}, {sP[12]}''')
    for q in range(6): ptab += [f's_bfe_u32 {sP[8+q]}, {sT3}, {hex(4 * q | 4 << 16)}', f's_lshl_b32 {sP[8+q]}, {sP[8+q]}, 11']
    a(f'''s_mov_b32 exec_lo, 0x01010101
          s_mov_b32 exec_hi, 0x01010101
          ds_write_b128 {k.vCW}, {k.cs3a[0:4]}
          ds_write_b128 {k.vCW}, {k.cs3a[4:8]} offset:128
          s_mov_b64 exec, -1
          s_lshl_b32 {sT[0]}, {sW}, 8
          s_add_u32 {sT[0]}, {sT[0]}, {L_CSX}
          v_lshl_add_u32 {t[1]}, {k.vTt}, 2, {sT[0]}
          ds_read_b32 {t[2]}, {t[1]}
          ds_read_b32 {t[3]}, {t[1]} offset:128
          s_mul_i32 {w4.sM}, {sW}, 20480
          s_add_u32 {w4.sM}, {w4.sM}, {L_W4}
          s_mul_i32 {w4.sB}, {sW}, {448 * 1024}
          s_lshl_b32 {sT[0]}, {sJ}, 7
          s_add_u32 {w4.sB}, {w4.sB}, {sT[0]}
          s_lshl_b32 {sT[0]}, {sA}, 6
          v_xor_b32 {k.vTr}, {sT[0]}, {k.vTr}
          v_add_u32 {w4.vA[0]}, {w4.sM}, {k.vTr}
          v_xor_b32 {w4.vA[1]}, 64, {w4.vA[0]}
          s_mul_i32 {sH3}, {sI}, 229376
          s_mul_i32 {sT[0]}, {sJ}, 14336
          s_add_u32 {sH3}, {sH3}, {sT[0]}
          s_add_u32 {sH3}, {sH3}, {k.sW12}
          s_add_u32 {sH3}, {sH3}, {WS_H3}
          s_cmp_eq_u32 {sW}, 3
          s_cselect_b32 {sT[0]}, {hex(OOB)}, 0
          v_or_b32 {vS1}, {sT[0]}, {k.vL16}
          v_lshlrev_b32 {t[0]}, 2, {vL}
          v_add_u32 {t[0]}, 49152, {t[0]}
          s_lshl_b32 {sT[5]}, {sI}, {FSC}
          s_add_u32 {sT[5]}, {sT[5]}, {k.sFc}
          s_add_u32 {sT[5]}, {sT[5]}, {FC - F1C}''')
    FST = 1 << 17
    k.vPF = vPF = v.alloc('vPF'); vPT = v.alloc('vPT', 2)
    E = lambda nm, d: int(os.environ.get(nm, d))
    late = L(f'''s_lshl_b32 {sF3[0]}, {sI}, 9
          s_add_u32 {sF3[0]}, {sF3[0]}, {WS_F3}
          s_lshl_b32 {sT3}, {sW}, 7
          s_add_u32 {sF3[1]}, {sF3[0]}, {sT3}
          s_lshr_b32 {sT3}, {sJ}, 1
          s_lshl_b32 {sT3}, {sT3}, 7
          s_add_u32 {sF3[0]}, {sF3[0]}, {sT3}
          s_and_b32 {sT3}, {sJ}, 1
          s_lshl_b32 {sT3}, {sT3}, 3
          s_add_u32 {sF3[0]}, {sF3[0]}, {sT3}
          v_and_b32 {vPF}, 1, {vL}
          v_lshlrev_b32 {vPF}, 3, {vPF}
          v_lshrrev_b32 {vPT[1]}, 4, {vL}
          v_min_u32 {vPT[1]}, 1, {vPT[1]}
          v_lshlrev_b32 {vPT[1]}, 31, {vPT[1]}
          v_lshl_or_b32 {vPT[0]}, {vL}, 7, {vPT[1]}
          v_and_b32 {vPT[1]}, {hex(OOB)}, {vS1}
          v_or_b32 {vPT[1]}, {vPT[1]}, {vPT[0]}
          s_mul_i32 {sH4[0]}, {sI}, 229376
          s_mul_i32 {sT3}, {sW}, 28672
          s_add_u32 {sH4[0]}, {sH4[0]}, {sT3}
          s_add_u32 {sH4[0]}, {sH4[0]}, {WS_H3}
          v_add_u32 {k.vB1}, 114688, {k.vL16}
          s_lshl_b32 {sB4}, {sW}, 13
          v_add_u32 {vB4a[0]}, {sB4}, {k.vTr}
          v_xor_b32 {vB4a[1]}, 64, {vB4a[0]}''')
    for ph in range(2):
        c_ = t[2 + ph]; A_ = AC[4*ph:4*ph+4]
        a(f'''v_cvt_pk_bf16_f32 {A_[0]}, {c_}, {c_}
              v_mov_b32 {A_[2]}, 0
              v_and_b32 {t[4]}, 0xffff0000, {A_[0]}
              v_mov_b32 {A_[3]}, 0
              v_sub_f32 {t[4]}, {c_}, {t[4]}
              v_mov_b32 {BM[4*ph+2]}, 0
              v_cvt_pk_bf16_f32 {A_[1]}, {t[4]}, 0
              v_mov_b32 {BM[4*ph+3]}, 0''')
    v.release(k.cs3a, k.vCW, k.vCR, k.B16)
    NB = 8
    acc = [v.alloc('acc0', 16), v.alloc('acc1', 16)]
    Bf = v.alloc('Bf', 4 * NB); tmp = v.alloc('tmp', 8); hp = v.alloc('hp', 8)
    st = v.alloc('st', 32); cI = v.alloc('cI', 2); c0 = v.alloc('c0', 2); c1 = v.alloc('c1', 2); cL = v.alloc('cL', 2)
    a.wait_vm(toks['s']); a.barrier()
    k.T()
    def stats_ops():
        O = [f'ds_read2st64_b32 {st[2*q:2*q+2]}, {t[0]} offset0:{2*q} offset1:{2*q+1}' for q in range(16)]
        n = 32
        while n > 2:
            O += [f'v_add_f32 {st[q]}, {st[q]}, {st[q+n//2]}' for q in range(n // 2)]
            n //= 2
        S, Q = st[0:2], st[2:4]
        O += [f'v_mov_b32 {Q[0]}, {S[0]}', f'v_mov_b32 {Q[1]}, {S[1]}', f'v_cmp_gt_u32 vcc, 32, {vL}',
              f'v_permlane32_swap_b32 {S[0]}, {Q[0]}', f'v_permlane32_swap_b32 {S[1]}, {Q[1]}']
        P_ = []
        for b in range(2):
            B_ = BM[4*b:4*b+4]
            P_.append(L(f'''v_mul_f32 {S[b]}, {k.sI512}, {S[b]}
                  v_mul_f32 {st[4+b]}, {S[b]}, {S[b]}
                  v_fma_f32 {Q[b]}, {Q[b]}, {k.sI512}, -{st[4+b]}
                  v_cndmask_b32 {S[b]}, 0, -{S[b]}, vcc
                  v_max_f32 {Q[b]}, 0, {Q[b]}
                  v_cvt_pk_bf16_f32 {B_[1]}, {S[b]}, 0
                  v_add_f32 {Q[b]}, {k.sEps}, {Q[b]}
                  v_lshlrev_b32 {st[8+b]}, 16, {B_[1]}
                  v_rsq_f32 {st[4+b]}, {Q[b]}
                  v_sub_f32 {st[8+b]}, {S[b]}, {st[8+b]}
                  v_log_f32 {cL[b]}, {Q[b]}
                  v_cvt_pk_bf16_f32 {B_[0]}, {S[b]}, {st[8+b]}
                  v_mul_f32 {cI[b]}, {Q[b]}, {st[4+b]}
                  v_mul_f32 {c0[b]}, {k.sC0}, {st[4+b]}
                  v_mul_f32 {st[6+b]}, {st[4+b]}, {st[4+b]}
                  v_mul_f32 {cL[b]}, 0.5, {cL[b]}
                  v_mul_f32 {st[6+b]}, {st[6+b]}, {st[4+b]}
                  v_mul_f32 {c1[b]}, {k.sC1}, {st[6+b]}'''))
        return O + [x for pr in zip(*P_) for x in pr]
    htok = k.htok3 = {}
    def store(ps, hf):
        ph, tb = ps >> 1, ps & 1
        def f():
            x_ = f'buffer_store_dwordx4 {hp[4*hf:4*hf+4]}, {vS1 if ph else k.vL16}, {k.sWS}, {sT[3]} offen offset:{2048*ph+1024*hf}'
            if E('DS', 0) == 1: a(x_)
            htok[ps] = k.st(x_) if E('DS', 0) < 2 else a(x_)
        return ([f's_add_u32 {sT[3]}, {sH3}, {tb * 114688}'] if hf == 0 else []) + [(f, 16)]
    def flag3(ps):
        a.wait_vm(htok[ps])
        a.barrier(lg=False)
        a(f's_add_u32 {sT3}, {sF3[0]}, {FST * ps}\nbuffer_store_dwordx2 {k.vNonce}, {k.vFlagOff}, {k.sWS}, {sT3} offen sc1')
        if E('PT', 0):
            a(f's_add_u32 {sT3}, {sH3}, {(ps & 1) * 114688}')
            a.touch(f'buffer_load_dword {k.junk}, {vPT[ps >> 1]}, {k.sWS}, {sT3} offen offset:{2048 * (ps >> 1)}')
        if FINE == '2': k.T()
    k.polls = {}
    def pissue(ps):
        so_ = s.alloc(f'pso{ps}'); a(f's_add_u32 {so_}, {sF3[1]}, {FST * ps}')
        k.polls[ps] = (k.spoll_issue if E('SP', 1) else k.poll_issue)(vPF, so_)
    def pcheck(ps):
        (k.spoll_check if E('SP', 1) else k.poll_check)(k.polls[ps]); s.release(k.polls[ps][2]); k.allowed = (16, 32, 44, 56)[ps]
        if FINE: k.T()
    k.flag3, k.pissue, k.pcheck = flag3, pissue, pcheck
    k.units = [(0, q) for q in range(16)] + [(1, q) for q in range(16)] + [(0, q) for q in range(16, 28)] + [(1, q) for q in range(16, 28)]
    k.allowed = 0; k.nld = 0; k.ring = deque(); k.frag = {}
    def ldnext():
        u = k.nld
        if u >= k.allowed or not k.ring: return False
        tb, q = k.units[u]; k.nld += 1
        r = k.frag[u] = k.ring.popleft()
        if q % 2 == 0: a(f's_add_u32 {sH4[1]}, {sH4[0]}, {sP[q >> 1]}')
        a(f'buffer_load_dwordx4 {r}, {k.vB1 if tb else k.vL16}, {k.sWS}, {sH4[1]} offen offset:{(q % 2) * 1024}')
        return True
    k.ldnext = ldnext
    def epi_ops(ps):
        tb = ps & 1; x = acc[ps & 1]; O = []
        for g in range(4):
            E = range(4*g, 4*g+4); w = lambda e: tmp[e & 7]
            O += [f'v_mul_f32 {w(e)}, {x[e]}, {x[e]}' for e in E]
            O += [f'v_fma_f32 {w(e)}, {w(e)}, {c1[tb]}, {c0[tb]}' for e in E]
            O += [f'v_fma_f32 {w(e)}, {w(e)}, {x[e]}, {cL[tb]}' for e in E]
            O += [f'v_exp_f32 {w(e)}, {w(e)}' for e in E]
            O += [f'v_add_f32 {w(e)}, {w(e)}, {cI[tb]}' for e in E]
            O += [f'v_rcp_f32 {w(e)}, {w(e)}' for e in E]
            O += [f'v_mul_f32 {w(e)}, {w(e)}, {x[e]}' for e in E]
            O += [f'v_cvt_pk_bf16_f32 {hp[e//2]}, {w(e)}, {w(e+1)}' for e in E[::2]]
            if g & 1: O += store(ps, g >> 1)
        return O
    def epi_pk(ps):
        tb = ps & 1; x = acc[ps & 1]; O = []
        for g in range(2):
            P = range(4*g, 4*g+4); T_ = lambda p: x[2*p:2*p+2]; w = lambda p: tmp[2*(p&3):2*(p&3)+2]
            O += [f'v_pk_mul_f32 {w(p)}, {T_(p)}, {T_(p)}' for p in P]
            O += [f'v_pk_fma_f32 {w(p)}, {w(p)}, {c1}, {c0} op_sel:[0,{tb},{tb}] op_sel_hi:[1,{tb},{tb}]' for p in P]
            O += [f'v_pk_fma_f32 {w(p)}, {w(p)}, {T_(p)}, {cL} op_sel:[0,0,{tb}] op_sel_hi:[1,1,{tb}]' for p in P]
            O += [f'v_exp_f32 {w(p)[z]}, {w(p)[z]}' for p in P for z in range(2)]
            O += [f'v_pk_add_f32 {w(p)}, {w(p)}, {cI} op_sel:[0,{tb}] op_sel_hi:[1,{tb}]' for p in P]
            O += [f'v_rcp_f32 {w(p)[z]}, {w(p)[z]}' for p in P for z in range(2)]
            O += [f'v_pk_mul_f32 {w(p)}, {w(p)}, {T_(p)}' for p in P]
            O += [f'v_cvt_pk_bf16_f32 {hp[p]}, {w(p)[0]}, {w(p)[1]}' for p in P]
            O += store(ps, g)
        return O
    tok = {}
    def rd(n):
        ps, ks = n >> 5, n & 31
        tok[n] = a(f'ds_read_b128 {Bf[4*(n%NB):4*(n%NB)+4]}, {k.vL16} offset:{(ps&1)*32768 + ks*1024}')
    F = Fill(a)
    for n in range(NB - 1): rd(n)
    so = stats_ops(); mk = {}
    def mark(n_, x): return (lambda: mk.__setitem__(n_, a(x)), 4)
    F.add(so[:15] + [mark('s', so[15])])
    F.add([f'ds_read_b128 {Y[4*q:4*q+4]}, {vEX[1]} offset:{1024*q}' for q in range(4)])
    F.add([f'v_add_f32 {KP[q]}, {KP[q]}, {Y[q]}' for q in range(16)])
    F.add([f'v_cvt_pk_bf16_f32 {xu[q]}, {KP[2*q]}, {KP[2*q+1]}' for q in range(8)])
    F.add([f'ds_write_b64 {vEX[2]}, {xu[2*q:2*q+2]} offset:{4096 + 512*q}' for q in range(4)])
    F.add([mark('x', f'ds_read_b128 {xu[4*q:4*q+4]}, {vEX[0]} offset:{4096 + 1024*q}') for q in range(2)])
    F.add([mark(f'st{q}', f'buffer_store_dwordx4 {xu[4*q:4*q+4]}, {k.vL16}, {k.sWS}, {sST} offen offset:{1024*q} sc1') for q in range(2)])
    F.add(ptab + late)
    E = lambda nm, d: int(os.environ.get(nm, d))
    ev = {}
    def at(n, f): ev.setdefault(n, []).append(f)
    at(E('FL0', 82), lambda: flag3(0)); at(E('FL1', 118), lambda: flag3(1))
    if E('PI0', 108) < 128: at(E('PI0', 108), lambda: pissue(0)); at(E('PC0', 116), lambda: pcheck(0))
    k.ev3 = ev
    k.wq = wq = deque(); cq = deque(); k.clk = 0; k.lastvm = -999; k.vmseen = a.nvm; k.cmax = 0; k.fmax = 0; k.u = 0
    PACE = k.PACE = E('PACE', 64); ftime = {}; AGE = E('AGE', 900); DMIN = E('DMIN', 10)
    def pump(dt, budget, force=False):
        k.clk += dt; used = 0
        while True:
            if a.nvm != k.vmseen: k.vmseen = a.nvm; k.lastvm = min(max(k.lastvm + PACE, k.clk - PACE // 2), k.clk + E('DEBT', 0)); k.lastany = k.clk
            ok = k.clk - k.lastvm >= PACE
            if not wq and w4.nf < k.fmax and w4.freeq and (w4.freeq[0][1] < 0 or w4.freeq[0][1] in w4.done):
                q = w4.nf; wq.extend(w4.fill_items()); wq.append((lambda q=q: ftime.__setitem__(q, k.clk), 0))
            if not cq and w4.nc < k.cmax and w4.nc in ftime and (force or k.clk - ftime[w4.nc] >= AGE): cq.extend(w4.cons_items())
            low = k.lowok and k.nld - k.u < DMIN
            if k.dmaslot and wq and k.lastany < k.clk:
                x = wq.popleft(); put(a, x); used += cost(x); continue
            if (ok or low and k.lastany < k.clk) and ldnext(): used += 10; continue
            if used >= budget: return used
            if wq and (ok or force or wq[0][2:] != ('vm',)):
                x = wq.popleft(); put(a, x); used += cost(x); continue
            if cq: x = cq.popleft(); put(a, x); used += cost(x); continue
            return used
    k.lastany = 0; k.lowok = False; k.dmaslot = False
    k.pump = pump
    G = 24
    for n in range(128):
        ps, ks = n >> 5, n & 31
        ph, tb = ps >> 1, ps & 1
        nx = n + NB - 1
        used = 4
        if nx in (16, 32, 48):
            if nx < 48: a.wait_lg(mk['s' if nx == 16 else 'x'])
            a.wait_vm(toks[nx // 16]); a.barrier(lg=False); used += 8
            if FINE == '2': k.T()
            if nx == 16: F.q.extendleft(reversed(side[15:20])); F.add(so[16:])
        if n % 4 == 0: a.wait_lg(tok[min(n + 3, 127)]); used += 4
        if n == 96:
            a.wait_vm(mk['st1']); a.barrier(lg=False); k.flag_store(sT[5]); used += 12
            for q in range(2): w4.freeq.appendleft(((sB4, vB4a, 4096 * q), -1))
        x = acc[ps & 1]
        a(f'v_mfma_f32_32x32x16_bf16 {x}, {AG(128*ph+4*ks, 4)}, {Bf[4*(n%NB):4*(n%NB)+4]}, {x if ks else 0}')
        if nx < 128: rd(nx)
        if n == 32:
            v.release(xu, KP, vEX, Y[0:16], st); s.release(sST, sX1)
        if n == E('W4S', 32): k.fmax = E('FM', 10)
        if n == 65: k.cmax = E('CM', 6)
        if n == 96:
            for q in range(E('NR0B', 16)): k.ring.append(v.alloc(f'rb{q}', 4, 2))
        for f in ev.get(n, []): f(); used += 16
        if n >= 26: used += pump(max(32, G + 8), 8)
        if ks == 31:
            if ps == 0: F.flush()
            a(f'v_mfma_f32_32x32x16_bf16 {x}, {AC[4*ph:4*ph+4]}, {BM[4*tb:4*tb+4]}, {x}')
            F.flush()
            k.T()
        if ks == 2 and ps >= 1:
            F.add(epi_ops(ps - 1))
            G = int(os.environ.get('GP', '28,32,32').split(',')[ps - 1])
        F.gap(G - used)
    v.release(Bf, AC, BM, acc[0])
    k.acc4 = [v.alloc(f'acc4{q}', 16) for q in range(4)]
    k.tailv = (acc[1], tmp, hp, cI, c0, c1, cL, vS1)
    k.epi3 = epi_pk(3) if E('TAIL', 0) else epi_ops(3)
    k.sH3 = sH3

def p4(k):
    a, v, s = k.a, k.v, k.s
    vL, sT, sA, sB, sW, sJ, sI = k.vL, k.sT, k.sA, k.sB, k.sW, k.sJ, k.sI
    t = k.e1t; w4 = k.w4; acc = k.acc4; sT3 = k.sT3
    E = lambda nm, d: int(os.environ.get(nm, d))
    vSD = v.alloc('vSD', 2); sSD = s.alloc('sSD', 2); vO = v.alloc('vO'); vSR = v.alloc('vSR'); vRW = v.alloc('vRW'); vRR = v.alloc('vRR', 3)
    def grow():
        while True:
            try: k.ring.append(v.alloc(f'rb{len(v.named)}_{len(k.ring)}_{k.nld}', 4, 2))
            except RuntimeError: break
    pcv = v.alloc('pcv', 4, 2)
    grow(); v.release(pcv)
    wq = k.wq; k.cmax = E('CM2', 8)
    F = Fill(a); TAIL = E('TAIL', 0)
    def tailfree():
        v.release(*k.tailv)
        pcv = v.alloc('pcv', 4, 2); grow(); v.release(pcv)
    if TAIL:
        evt = {}
        def at(n, f): evt.setdefault(n, []).append(f)
        for n in k.ev3:
            if n >= 128:
                for f in k.ev3[n]: at(n - 128, f)
        ops = glue(k.epi3)
        for n, x in enumerate(ops):
            for f in evt.pop(n, []): f()
            put(a, x)
            k.pump(cost(x), 0)
        for n in sorted(evt):
            for f in evt[n]: f()
        tailfree()
        k.T()
    else:
        F.add(k.epi3 + [(tailfree, 0)])
    main = L(f'''v_lshrrev_b32 {t[0]}, 3, {vL}
          v_mul_u32_u24 {t[0]}, {XTS}, {t[0]}
          v_and_b32 {t[1]}, 7, {vL}
          v_lshl_add_u32 {vSD[0]}, {t[1]}, 4, {t[0]}
          v_add_u32 {vSD[1]}, {8 * XTS - 1024}, {vSD[0]}
          s_lshl_b32 {sSD[0]}, {sJ}, 2
          s_add_u32 {sSD[0]}, {sSD[0]}, {sW}
          s_mul_i32 {sSD[0]}, {sSD[0]}, {16 * XTS}
          s_lshl_b32 {sT[1]}, {sI}, 7
          s_add_u32 {sSD[0]}, {sSD[0]}, {sT[1]}
          s_add_u32 {sSD[0]}, {sSD[0]}, {WS_ST}
          s_lshl_b32 {sSD[1]}, {sW}, 11
          v_add_u32 {vRW}, {w4.sM}, {k.vL16}
          v_bfe_u32 {t[4]}, {vL}, 2, 2
          v_lshl_add_u32 {t[4]}, {k.vH}, 2, {t[4]}
          v_lshlrev_b32 {t[4]}, 7, {t[4]}
          v_bfe_u32 {t[5]}, {vL}, 4, 1
          v_lshl_add_u32 {t[4]}, {t[5]}, 5, {t[4]}
          v_and_b32 {t[5]}, 3, {vL}
          v_lshl_add_u32 {t[4]}, {t[5]}, 3, {t[4]}
          s_lshl_b32 {sT[0]}, {sA}, 12
          s_lshl_b32 {sT[1]}, {sB}, 6
          s_add_u32 {sT[0]}, {sT[0]}, {sT[1]}
          s_add_u32 {sT[0]}, {sT[0]}, {L_ST2}
          v_add_u32 {vSR}, {sT[0]}, {t[4]}
          v_lshlrev_b32 {t[5]}, 10, {k.vTt}
          v_lshl_add_u32 {t[5]}, {k.vH}, 4, {t[5]}
          s_lshl_b32 {sT[0]}, {sI}, 16
          s_lshl_b32 {sT[1]}, {sB}, 15
          s_add_u32 {sT[0]}, {sT[0]}, {sT[1]}
          s_lshl_b32 {sT[1]}, {sJ}, 7
          s_add_u32 {sT[0]}, {sT[0]}, {sT[1]}
          s_lshl_b32 {sT[1]}, {sA}, 6
          s_add_u32 {sT[0]}, {sT[0]}, {sT[1]}
          v_add_u32 {vO}, {sT[0]}, {t[5]}''')
    for x in range(1, 4):
        main += L(f's_xor_b32 {sT[1]}, {sW}, {x}\ns_mul_i32 {sT[1]}, {sT[1]}, 20480\ns_add_u32 {sT[1]}, {sT[1]}, {L_W4 + (x-1)*4096}\nv_add_u32 {vRR[x-1]}, {sT[1]}, {k.vL16}')
    pcs = {}
    def cissue():
        a(f's_add_u32 {sT[5]}, {k.sFc}, {FC - F1C}'); pcs[0] = k.poll_issue(k.vP32, sT[5])
    def ccheck():
        assert not F.q; k.poll_check(pcs[0])
        def f():
            a(f's_add_u32 m0, {sSD[1]}, {L_ST2}\ns_nop 0')
            a(f'buffer_load_dwordx4 {vSD[0]}, {k.sWS}, {sSD[0]} offen lds')
            a(f'buffer_load_dwordx4 {vSD[1]}, {k.sWS}, {sSD[0]} offen offset:1024 lds')
        wq.append((f, 24, 'vm'))
    ev = {}
    def au(n, f): ev.setdefault(n, []).append(f)
    au(E('UI1', 2), lambda: k.pissue(1)); au(E('UC1', 9), lambda: k.pcheck(1))
    au(E('UF2', 10), lambda: k.flag3(2)); au(E('UF3', 18), lambda: k.flag3(3))
    if E('UI2', 17) < 56: au(E('UI2', 17), lambda: k.pissue(2)); au(E('UC2', 22), lambda: k.pcheck(2))
    au(E('UI3', 27), lambda: k.pissue(3)); au(E('UC3', 32), lambda: k.pcheck(3))
    au(E('UIC', 18), cissue); au(E('UCC', 40), ccheck)
    F.add([x.replace(str(sT[0]) + ',', str(sT[2]) + ',') for x in main])
    if TAIL:
        while k.ldnext(): pass
    k.lowok = True; k.cmax = 14
    au(E('UW', 14), lambda: setattr(k, 'fmax', 14))
    first = set()
    for u, (tb, q) in enumerate(k.units):
        k.u = u
        for f in ev.get(u, []): f()
        while u not in k.frag: assert k.ldnext(), u
        while (q >> 1) not in w4.done:
            n0 = len(a.ins); k.pump(16, 16, True)
            if len(a.ins) == n0 and not wq: k.fmax = 14
        B = k.frag[u]
        for de in range(2):
            x = acc[de+2*tb]
            a(f'v_mfma_f32_32x32x16_bf16 {x}, {AG(8*q+4*de, 4)}, {B}, {x if (de, tb) in first else 0}')
            first.add((de, tb))
            if de == 1: k.ring.append(B)
            k.dmaslot = de == 0 and u >= E('UW', 14)
            used = k.pump(32, 8 if F.q else 16)
            F.gap(E('G4', 36) - used)
        if u in (0, 15, 31, 43): k.T()
    while wq: put(a, wq.popleft())
    assert not F.q
    v.release(*k.ring, k.vB1)
    k.T()
    sw = a.label_name('SW')
    a(f's_cmp_eq_u32 {sB}, 0')
    a.raw('s_nop 15')
    a.raw(f's_cbranch_scc1 {sw}')
    for q in range(32): a(f'v_swap_b32 {acc[q>>4][q&15]}, {acc[2+(q>>4)][q&15]}')
    a.label(sw)
    for x in range(1, 4):
        for q in range(4): a(f'ds_write_b128 {vRW}, {acc[x][4*q:4*q+4]} offset:{(x-1)*4096 + q*1024}')
    X = k.XN
    for q in range(8): a(f'v_pk_add_f32 {X[2*q:2*q+2]}, {X[2*q:2*q+2]}, {acc[0][2*q:2*q+2]}')
    U_ = v.alloc('U_', 16)
    for q in range(8): a(f'v_lshlrev_b32 {U_[2*q]}, 16, {k.U8[q]}\nv_and_b32 {U_[2*q+1]}, 0xffff0000, {k.U8[q]}')
    sNL = s.alloc('nl2', 2); a(f's_mov_b32 {sNL[0]}, {fb(-1.4426950408889634)}')
    a.wait_all()
    a.barrier()
    k.T()
    sv = v.alloc('sv', 8)
    for x in range(1, 4):
        for q in range(4): a(f'ds_read_b128 {acc[x][4*q:4*q+4]}, {vRR[x-1]} offset:{q*1024}')
    for q in range(4): a(f'ds_read_b64_tr_b16 {sv[2*q:2*q+2]}, {vSR} offset:{1024*q}')
    for x in range(1, 4):
        for q in range(8): a(f'v_pk_add_f32 {X[2*q:2*q+2]}, {X[2*q:2*q+2]}, {acc[x][2*q:2*q+2]}')
    E = acc[0]; S_ = acc[1]
    for hf in range(2):
        Q = range(4*hf, 4*hf+4)
        for q in Q: a(f'v_pk_mul_f32 {E[2*q:2*q+2]}, {X[2*q:2*q+2]}, {sNL} op_sel_hi:[1,0]')
        for q in Q: a(f'v_exp_f32 {E[2*q]}, {E[2*q]}\nv_exp_f32 {E[2*q+1]}, {E[2*q+1]}')
        for q in Q: a(f'v_lshlrev_b32 {S_[2*q]}, 16, {sv[q]}\nv_and_b32 {S_[2*q+1]}, 0xffff0000, {sv[q]}')
        for q in Q: a(f'v_pk_add_f32 {E[2*q:2*q+2]}, {E[2*q:2*q+2]}, 1.0 op_sel_hi:[1,0]')
        for q in Q: a(f'v_rcp_f32 {E[2*q]}, {E[2*q]}\nv_rcp_f32 {E[2*q+1]}, {E[2*q+1]}')
        for q in Q: a(f'v_pk_mul_f32 {X[2*q:2*q+2]}, {X[2*q:2*q+2]}, {S_[2*q:2*q+2]}')
        for q in Q: a(f'v_pk_fma_f32 {X[2*q:2*q+2]}, {X[2*q:2*q+2]}, {E[2*q:2*q+2]}, {U_[2*q:2*q+2]}')
        for q in Q: a(f'v_cvt_pk_bf16_f32 {sv[q]}, {X[2*q]}, {X[2*q+1]}')
        a(f'v_permlane32_swap_b32 {sv[4*hf]}, {sv[4*hf+2]}\nv_permlane32_swap_b32 {sv[4*hf+1]}, {sv[4*hf+3]}')
        a(f'buffer_store_dwordx4 {sv[4*hf:4*hf+4]}, {vO}, {k.sOut}, 0 offen offset:{32*hf}')
```

```python
from gen import *
from asmlib import R, TRANS
from collections import deque

def AG(s, n): return R('a', s, n)
def L(txt): return [l.strip() for l in txt.strip().split('\n') if l.strip()]
def cost(x):
    if isinstance(x, tuple): return x[1]
    if '\n' in x: return sum(cost(y) for y in x.split('\n'))
    if x.startswith(TRANS): return 8
    if x.startswith(('buffer_', 'global_')): return 8
    return 4
def put(a, x):
    if isinstance(x, tuple): return x[0]()
    return a(x)
def glue(items):
    out = []; pend = None
    for x in items:
        if pend is not None: x = pend + '\n' + x; pend = None
        if isinstance(x, str) and x.split('\n')[-1].startswith('s_cmp'): pend = x
        else: out.append(x)
    assert pend is None
    return out
def weave(a, main, side, every, start=0):
    side = deque(side); main = glue(main)
    for n, x in enumerate(main):
        put(a, x)
        if side and n >= start and (n - start) % every == every - 1: put(a, side.popleft())
    while side: put(a, side.popleft())
class Fill:
    def __init__(self, a): self.a, self.q, self.carry = a, deque(), 0
    def add(self, items): self.q.extend(glue(items))
    def gap(self, budget):
        self.carry = min(self.carry + budget, budget + 4)
        while self.q and self.carry >= cost(self.q[0]):
            x = self.q.popleft(); self.carry -= cost(x); put(self.a, x)
    def flush(self):
        while self.q: put(self.a, self.q.popleft())

class Stream:
    def __init__(self, k, srd, voff, npair, depth, rowbytes, areg):
        self.k, self.srd, self.voff, self.n, self.depth, self.rb, self.areg = k, srd, voff, npair, depth, rowbytes, areg
        self.sM = k.s.alloc('stM'); self.sO = k.s.alloc('stO'); self.vA = k.v.alloc('stA', 2); self.sB = k.s.alloc('stB'); self.sE = k.s.alloc('stE')
        self.ftok = {}; self.ctok = {}; self.nf = 0; self.nc = 0
        self.slot = lambda q: (self.sM, self.vA, (q % depth) * 4096)
        self.reuse = lambda q: q - depth
        self.perm = None; self.freeq = None; self.slots = {}; self.done = set()
    def fill_items(self):
        a = self.k.a; q = self.nf
        assert q < self.n
        self.nf += 1
        if self.freeq is not None:
            self.slots[q], prev = self.freeq.popleft()
            sM, _, o = self.slots[q]
            def head2():
                if prev >= 0: a.wait_lg(self.ctok[prev])
                a(f's_add_u32 m0, {sM}, {o}\ns_lshl4_add_u32 {self.sO}, {self.sP[q]}, {self.sB}')
            def dma2(e):
                def f(): self.ftok[q] = a(f'buffer_load_dwordx4 {self.voff[e]}, {self.srd}, {self.sO} offen offset:{1024*e} lds')
                return (f, 8, 'vm')
            return [(head2, 8)] + [dma2(e) for e in range(4)]
        sM, _, o = self.slot(q)
        def head():
            r = self.reuse(q)
            if r >= 0: a.wait_lg(self.ctok[r])
            a(f's_add_u32 m0, {sM}, {o}')
            if q: a(f's_add_u32 {self.sO}, {self.sO}, {32 * self.rb}\ns_cmp_eq_u32 {self.sO}, {self.sE}\ns_cselect_b32 {self.sO}, {self.sB}, {self.sO}')
        def dma(e):
            def f():
                if 's' in os.environ.get('XC', '') and self.n == 16 and q >= 4: self.ftok[q] = -1; return
                self.ftok[q] = a(f'buffer_load_dwordx4 {self.voff[e]}, {self.srd}, {self.sO} offen offset:{1024*e} lds')
            return (f, 8)
        return [(head, 16)] + [dma(e) for e in range(4)]
    def cons_items(self):
        a = self.k.a; q = self.nc
        assert q < self.nf
        self.nc += 1
        if self.freeq is not None:
            _, vA, o = self.slots[q]; self.freeq.append((self.slots[q], q))
        else: _, vA, o = self.slot(q)
        out = []
        for st in range(2):
            for ph in range(2):
                d = self.areg(2 * q + st, ph)
                for io in range(2):
                    def f(d=d, ph=ph, io=io, st=st):
                        if (st, ph, io) == (0, 0, 0): a.wait_vm(self.ftok[q])
                        self.ctok[q] = a(f'ds_read_b64_tr_b16 {d[2*io:2*io+2]}, {vA[ph]} offset:{o + 2048*st + 1024*io}')
                        if (st, ph, io) == (1, 1, 1): self.done.add(q)
                    out.append((f, 4))
        return out
    def init(self, rot):
        return f's_add_u32 {self.sE}, {self.sB}, {32 * self.rb * self.n}\ns_mul_i32 {self.sO}, {rot}, {32 * self.rb}\ns_add_u32 {self.sO}, {self.sO}, {self.sB}'
    def free(self): self.k.s.release(self.sM, self.sO, self.sB, self.sE); self.k.v.release(self.vA)

def cs3_items(k, upto):
    out = []
    while k.ncs3 < upto:
        q = k.ncs3; k.ncs3 += 1
        for ph in range(2):
            d = k.cs3a[4 * ph:4 * ph + 4]
            out.append(f'v_mfma_f32_16x16x32_bf16 {d}, {AG(128 * ph + 4 * q, 4)}, {k.B16}, {d if q else 0}')
    return out

def w_dma_items(k, srd, toks, rot=None):
    a = k.a; out = []
    for c in range(4):
        if rot is None: out.append((lambda c=c: a(f's_add_u32 m0, {k.sW12}, {L_W + c*16384}\ns_add_u32 {k.sT[5]}, {k.sWoff}, {c*131072}'), 8))
        else: out.append((lambda c=c: a(f's_add_u32 m0, {k.sW12}, {L_W + c*16384}\ns_add_u32 {k.sT[5]}, {rot}, {c*131072}\ns_and_b32 {k.sT[5]}, {k.sT[5]}, 0x7ffff'), 12))
        for e in range(4):
            def f(c=c, e=e): toks[c] = a(f'buffer_load_dwordx4 {k.vWd[e]}, {srd}, {k.sT[5]} offen offset:{1024*e} lds')
            out.append((f, 8))
    return out


def merge(x, y):
    x, y = glue(x), glue(y)
    cx, cy = sum(map(cost, x)) or 1, sum(map(cost, y)) or 1
    out = []; i = j = 0; ax = ay = 0
    while i < len(x) or j < len(y):
        if j >= len(y) or (i < len(x) and ax / cx <= ay / cy): out.append(x[i]); ax += cost(x[i]); i += 1
        else: out.append(y[j]); ay += cost(y[j]); j += 1
    return out
```

```python
import sys, struct
sys.path.insert(0, 'gen')
from asmlib import Asm, Regs, R

def fb(x): return '0x%08x' % struct.unpack('<I', struct.pack('<f', x))[0]

NAME = 'recurrent_scan__ssm_conv_s4d__mixer_s_mlp__prompt'
WS_H, WS_X1, WS_H3 = 0, 2 << 20, 4 << 20
WS_XT, WS_ST, WS_STAT, WS_FLAG, WS_TS = 12 << 20, 15 << 20, 18 << 20, 19 << 20, (19 << 20) + 65536
WS_SIZE = 20 << 20
WS_F3 = 35 << 19
XTS = 4224
XTT = 8448
F1R, F2, F1C, FC = 0, 32768, 65536, 98304
WS_FL = (18 << 20) + (1 << 19)
UKC = 16896
L_W = 69632
L_XS = 135168; XSW = 2544
L_STATP = 145344
L_SP = 147456
L_CP = 69632; CS = 4160
L_STG = 102912
L_UC = 152064; UCS = 5088; UCP = 992
L_KT = 152064 + 16; KTS = 3088
L_CSX = 67584
KG_CH = 27648; KG_R = 512; KG_E = 22; KA = 200
L_SU = 135680
L_ST2 = 69632
L_W4 = 77824
OOB = 0x80000000
import os
FINE = os.environ.get('FINE')
FAST = os.environ.get('FAST')
FSR = int(os.environ.get('FSR', 3)); FSC = int(os.environ.get('FSC', 3))
ROT = int(os.environ.get('ROT', 0))
TSOP = 's_memtime' if os.environ.get('TSCLK') else 's_memrealtime'

class K:
    def __init__(self, stop=99, ts=False):
        self.a = Asm(); self.v = Regs('v', 256, 1); self.s = Regs('s', 100, 3)
        self.v.top = {'vts','lane','par','vWd','vW3','vnonce','flagoff','GA','vTrP','B16','h','tt','acc','U8','vCW','vCR','l16','vP8','vP32','cs3a','stA','t','CS3','D','junk','vT','cA','cB','cS','polld','vB4a','vB4','vSD','vO','vSR','vRW','vRR','vPT','vPF','vFW','vS1'} | set(os.environ.get('TOPX','').split(','))
        self.stop = stop; self.ts = ts; self.nts = 0; self.stubs = []

    def T(self):
        if not self.ts: return
        if self.nts: self.a(f'v_writelane_b32 {self.vTS}, {self.tsr[0]}, {self.nts - 1}')
        self.nts += 1
        self.a(f'{TSOP} {self.tsr}')

    def srd(self, name, ptr, nbytes):
        r = self.s.alloc(name, 4)
        self.a(f's_mov_b32 {r[0]}, {ptr[0]}\ns_mov_b32 {r[1]}, {ptr[1]}\ns_mov_b32 {r[2]}, {hex(nbytes)}\ns_mov_b32 {r[3]}, 0x20000')
        return r

    def sconst(self, name, val):
        r = self.s.alloc(name); self.a(f's_mov_b32 {r}, {val}'); return r

    def st(self, *txts):
        a = self.a
        if not FAST:
            for x in txts: r = a(x + ' sc1')
            return r
        for x in txts: a.e(x, only_wait=True)
        sl = a.label_name('SLOW'); bk = a.label_name('BACK')
        a(f's_cmp_lg_u32 {self.sSlow}, 0')
        a.raw(f's_cbranch_scc1 {sl}')
        for x in txts: r = a(x)
        a.label(bk)
        self.stubs += [sl + ':'] + [x + ' sc1' for x in txts] + [f's_branch {bk}']
        return r

    def flag_store(self, soff, row=False):
        x = f'buffer_store_dwordx2 {self.vNonce}, {self.vFlagOff}, {self.sWS}, {soff} offen'
        if row and not os.environ.get('FLAGSC1'): self.st(x)
        else: self.a(x + ' sc1')

    def poll_issue(self, voff, soff, nm='polld'):
        a = self.a
        d = self.v.alloc(nm, 2)
        a(f'buffer_load_dwordx2 {d}, {voff}, {self.sWS}, {soff} offen sc1')
        return (d, voff, soff)

    def poll_check(self, p):
        a = self.a; d, voff, soff = p
        ok = a.label_name('PK'); lp = a.label_name('PL')
        if self.ts: a(f's_mov_b32 {self.sT[0]}, 0')
        a(f'v_cmp_ne_u64 vcc, {self.sNonce}, {d}')
        a.raw('s_nop 4')
        a.raw(f's_cbranch_vccz {ok}')
        a(f's_mov_b32 {self.sT[0]}, 0')
        a.label(lp)
        a.raw(f'buffer_load_dwordx2 {d}, {voff}, {self.sWS}, {soff} offen sc1')
        a.raw(f's_add_u32 {self.sT[0]}, {self.sT[0]}, 1')
        a.raw('s_waitcnt vmcnt(0)')
        a.raw(f'v_cmp_ne_u64 vcc, {self.sNonce}, {d}')
        a.raw(f's_cmp_gt_u32 {self.sT[0]}, 0x40000')
        a.raw(f's_cbranch_scc1 {ok}')
        a.raw('s_nop 2')
        a.raw(f's_cbranch_vccnz {lp}')
        a.label(ok)
        if self.ts:
            self.npoll = getattr(self, 'npoll', 0) + 1
            a(f'V_WRITELANE_b32 {self.vTS}, {self.sT[0]}, {64 - self.npoll}'.replace('V_WRITELANE', 'v_writelane') + ' ')
            a.ins[-1].txt = a.ins[-1].txt.replace('v_writelane', 'V_writelane')
        self.v.release(d)

    def spoll_issue(self, voff, soff):
        d = self.s.alloc('spoll', 4)
        self.a(f's_buffer_load_dwordx4 {d}, {self.sWS}, {soff} glc')
        return (d, voff, soff)

    def spoll_check(self, p):
        a = self.a; d, voff, soff = p
        bk = a.label_name('SB'); fl = a.label_name('SF'); vl = a.label_name('SV')
        t = self.v.alloc('polld', 2); c = self.sT[0]
        if self.ts: a(f's_mov_b32 {c}, 0')
        a(f's_cmp_eq_u64 {d[0:2]}, {self.sNonce}')
        a(f's_cselect_b64 {d[0:2]}, {d[2:4]}, 0')
        a(f's_cmp_eq_u64 {d[0:2]}, {self.sNonce}')
        a.raw(f's_cbranch_scc0 {fl}')
        a.label(bk)
        self.stubs += [fl + ':', f's_mov_b32 {c}, 0', fl + 'L:',
            f's_buffer_load_dwordx4 {d}, {self.sWS}, {soff} glc', f's_add_u32 {c}, {c}, 1', 's_waitcnt lgkmcnt(0)',
            f's_cmp_eq_u64 {d[0:2]}, {self.sNonce}', f's_cselect_b64 {d[0:2]}, {d[2:4]}, 0', f's_cmp_eq_u64 {d[0:2]}, {self.sNonce}',
            f's_cbranch_scc1 {bk}', f's_cmp_lt_u32 {c}, 6', f's_cbranch_scc1 {fl}L',
            vl + ':', f'buffer_load_dwordx2 {t}, {voff}, {self.sWS}, {soff} offen sc1', f's_add_u32 {c}, {c}, 1', 's_waitcnt vmcnt(0)',
            f'v_cmp_ne_u64 vcc, {self.sNonce}, {t}', f's_cmp_gt_u32 {c}, 0x40000', f's_cbranch_scc1 {bk}', 's_nop 4', f's_cbranch_vccnz {vl}', f's_branch {bk}']
        if self.ts:
            self.npoll = getattr(self, 'npoll', 0) + 1
            a(f'v_writelane_b32 {self.vTS}, {c}, {64 - self.npoll}')
            a.ins[-1].txt = a.ins[-1].txt.replace('v_writelane', 'V_writelane')
        self.v.release(t); self.s.release(d)

    def gelu_ops(self, acc, cs, negm, c0r, c1r3, ir, out, tmp):
        def sel(x): return x[0], x[1]
        ops = []
        for g in range(2):
            P = range(4 * g, 4 * g + 4)
            t = lambda p: acc[2 * p:2 * p + 2]
            w = lambda p: tmp[2 * (p & 3):2 * (p & 3) + 2]
            for p in P:
                r, h = negm
                ops.append(f'v_pk_fma_f32 {t(p)}, {cs[2*p:2*p+2]}, {r}, {t(p)} op_sel:[0,{h},0] op_sel_hi:[1,{h},1]')
            for p in P: ops.append(f'v_pk_mul_f32 {w(p)}, {t(p)}, {t(p)}')
            for p in P:
                (r1, h1), (r0, h0) = c1r3, c0r
                ops.append(f'v_pk_fma_f32 {w(p)}, {w(p)}, {r1}, {r0} op_sel:[0,{h1},{h0}] op_sel_hi:[1,{h1},{h0}]')
            for p in P: ops.append(f'v_pk_mul_f32 {w(p)}, {w(p)}, {t(p)}')
            for p in P:
                ops.append(f'v_exp_f32 {w(p)[0]}, {w(p)[0]}'); ops.append(f'v_exp_f32 {w(p)[1]}, {w(p)[1]}')
            for p in P:
                r, h = ir
                ops.append(f'v_pk_fma_f32 {w(p)}, {w(p)}, {r}, {r} op_sel:[0,{h},{h}] op_sel_hi:[1,{h},{h}]')
            for p in P:
                ops.append(f'v_rcp_f32 {w(p)[0]}, {w(p)[0]}'); ops.append(f'v_rcp_f32 {w(p)[1]}, {w(p)[1]}')
            for p in P: ops.append(f'v_pk_mul_f32 {w(p)}, {w(p)}, {t(p)}')
            for p in P: ops.append(f'v_cvt_pk_bf16_f32 {out[p]}, {w(p)[0]}, {w(p)[1]}')
        return ops

    def cmul(self, d, x, y, t):
        self.a(f'v_pk_mul_f32 {t}, {x}, {y} op_sel:[0,0] op_sel_hi:[0,1]')
        self.a(f'v_pk_fma_f32 {d}, {x}, {y}, {t} op_sel:[1,1,0] op_sel_hi:[1,0,1] neg_lo:[1,0,0]')

    def finish(self):
        a = self.a
        if self.ts:
            self.T()
            a.wait_all()
            self.T()
            o = self.v.alloc('tso')
            a(f's_lshl_b32 {self.sT[0]}, s2, 10\ns_lshl_b32 {self.sT[1]}, {self.sW}, 8\ns_add_u32 {self.sT[0]}, {self.sT[0]}, {self.sT[1]}\ns_add_u32 {self.sT[0]}, {self.sT[0]}, {WS_TS}')
            a(f'v_and_b32 {o}, 63, v0\nv_lshlrev_b32 {o}, 2, {o}')
            a(f'buffer_store_dword {self.vTS}, {o}, {self.sWS}, {self.sT[0]} offen')
        a.wait_all()
        a.label('END')
        a.raw('s_endpgm')
        for x in self.stubs: a.raw(x)

    def build(self):
        import phases
        steps = phases.STEPS
        for n, f in enumerate(steps):
            if n > self.stop: break
            self.a.comment(f'---- {f.__name__} ----')
            f(self)
        self.finish()
        hdr = open(f'cdna_kernels/{NAME}.s.ref').read()
        top = hdr[:hdr.index('; @launch')]
        return top + f'''; @launch grid=(256,1,1) block=(256,1,1) lds=163840
.amdgcn_target "amdgcn-amd-amdhsa--gfx950"
.text
.globl {NAME}_kernel
.p2align 8
.type {NAME}_kernel,@function
{NAME}_kernel:
{self.a.text()}
.section .rodata,"a"
.p2align 6
.amdhsa_kernel {NAME}_kernel
  .amdhsa_next_free_vgpr 512
  .amdhsa_next_free_sgpr 102
  .amdhsa_accum_offset 256
  .amdhsa_group_segment_fixed_size 0
  .amdhsa_kernarg_size 120
  .amdhsa_user_sgpr_count 2
  .amdhsa_user_sgpr_kernarg_segment_ptr 1
  .amdhsa_system_sgpr_workgroup_id_x 1
.end_amdhsa_kernel
'''

if __name__ == '__main__':
    import argparse
    ap = argparse.ArgumentParser()
    ap.add_argument('--stop', type=int, default=99); ap.add_argument('--ts', action='store_true'); ap.add_argument('-o', default=f'cdna_kernels/{NAME}.s')
    g = ap.parse_args()
    k = K(g.stop, g.ts)
    open(g.o, 'w').write(k.build())
    print('vgpr hi', k.v.hi, 'sgpr hi', k.s.hi, 'instrs', len(k.a.ins))
```
